```python
import torch

def _softmax(x, axis=-1):
    return torch.softmax(x, dim=axis)
def _gelu(x):
    return torch.nn.functional.gelu(x, approximate="tanh")
def _silu(x):
    return torch.nn.functional.silu(x)
def _sigmoid(x):
    return torch.sigmoid(x)
def _layernorm(x, axis=-1, eps=1e-5):
    m = x.mean(dim=axis, keepdim=True)
    v = x.var(dim=axis, keepdim=True, unbiased=False)
    return (x - m) / torch.sqrt(v + eps)
def _scatter_add(tgt, idx, src, axis=0):
    return tgt.clone().index_add_(axis, idx, src)
def _segment_sum(src, seg, n):
    out = torch.zeros((n,) + src.shape[1:], dtype=src.dtype)
    return out.index_add_(0, seg, src)
def _pad(x, pw):
    flat = tuple(v for pair in reversed(pw) for v in pair)
    return torch.nn.functional.pad(x, flat)

kernel_name = 'recurrent_scan__ssm_conv_h3__glu_gated_swiglu__prompt'

def setup_inputs():

    _w = (lambda a: (lambda t: t.to(torch.bfloat16) if t.is_floating_point() else t)(torch.as_tensor(a)))
    def _A_setup():
        B, S, D = 1, 2048, 512
        ks = 4
        return {
            "q": _w((lambda *s: torch.randn(*s, dtype=torch.bfloat16) * 0.05)(B, S, D)),
            "k": _w((lambda *s: torch.randn(*s, dtype=torch.bfloat16) * 0.8)(B, S, D)),
            "v": _w((lambda *s: torch.randn(*s, dtype=torch.bfloat16) * 0.8)(B, S, D)),
            "shift_k": _w((lambda *s: torch.randn(*s, dtype=torch.bfloat16) * 0.8)(D, ks) * 0.5),
            "ssm_k": _w((lambda *s: torch.randn(*s, dtype=torch.bfloat16) * 0.8)(D, S) * (1.0 / S ** 0.5)),
            "ssm_D": _w((lambda *s: torch.randn(*s, dtype=torch.bfloat16) * 0.8)(D)),
        }
    _A_in = _A_setup()

    def _B_setup():
        B, S, D, F = 1, 2048, 512, 1792
        return {
            "x": _w((lambda *s: torch.randn(*s, dtype=torch.bfloat16) * 0.05)(B, S, D)),
            "w1": _w((lambda *s: torch.randn(*s, dtype=torch.bfloat16) * 0.2)(D, F) * (2.0 / D) ** 0.5),
            "w3": _w((lambda *s: torch.randn(*s, dtype=torch.bfloat16) * 0.2)(D, F) * (2.0 / D) ** 0.5),
            "w2": _w((lambda *s: torch.randn(*s, dtype=torch.bfloat16) * 0.2)(F, D) * (2.0 / F) ** 0.5),
        }
    _B_in = _B_setup()

    return {
        "A_q": _A_in["q"],
        "A_k": _A_in["k"],
        "A_v": _A_in["v"],
        "A_shift_k": _A_in["shift_k"],
        "A_ssm_k": _A_in["ssm_k"],
        "A_ssm_D": _A_in["ssm_D"],
        "B_x": _B_in["x"],
        "B_w1": _B_in["w1"],
        "B_w3": _B_in["w3"],
        "B_w2": _B_in["w2"],
    }

def reference(A_q, A_k, A_v, A_shift_k, A_ssm_k, A_ssm_D, B_x, B_w1, B_w3, B_w2):
    def _A_ref(q, k, v, shift_k, ssm_k, ssm_D):
        B, S, D = q.shape
        ks = shift_k.shape[-1]
        k_pad = _pad(k, ((0, 0), (ks - 1, 0), (0, 0)))
        k_shift = torch.zeros_like(k)
        for t in range(ks):
            k_shift = k_shift + k_pad[:, t:t + S, :] * shift_k[:, ks - 1 - t][None, None, :]
        kv = k_shift * v
        L = 2 * S
        kv_pad = _pad(kv, ((0, 0), (0, S), (0, 0)))
        kf_pad = _pad(ssm_k, ((0, 0), (0, S)))
        kv_f = (lambda x, axes=(-2,-1): torch.fft.rfft2(x.float(), dim=axes))(kv_pad[:, None, :, :], axes=(1, 2))
        kf_f = (lambda x, axes=(-2,-1): torch.fft.rfft2(x.float(), dim=axes))(kf_pad[:, None, :], axes=(1, 2))
        kf_f = (lambda x, *d: x.permute(*d))(kf_f, 1, 2, 0)
        y_f = kv_f * kf_f[None, :, :, :]
        y = (lambda x, s, axes=(-2,-1): torch.fft.irfft2(x, s=s, dim=axes).to(torch.bfloat16))(y_f, (1, L), axes=(1, 2))[:, 0, :S, :]
        y = y + kv * ssm_D[None, None, :]
        return q * y

    def _B_ref(x, w1, w3, w2):
        gate = torch.einsum("bsd,df->bsf", x, w1)
        up = torch.einsum("bsd,df->bsf", x, w3)
        h = _silu(gate) * up
        out = torch.einsum("bsf,fd->bsd", h, w2)
        return out

    x = A_q
    xn = _layernorm(x, axis=-1)
    s = _A_ref(xn, A_k, A_v, A_shift_k, A_ssm_k, A_ssm_D)
    g = _silu(_B_ref(xn, B_w1, B_w3, B_w2))
    return x + s * g
```

```python
NAME = "recurrent_scan__ssm_conv_h3__glu_gated_swiglu__prompt"
KA = dict(q=0, k=8, v=16, shift=24, ssmk=32, ssmD=40, bx=48, w1=56, w3=64, w2=72, out=80, dbg=88, ws=96)

class Asm:
    def __init__(self):
        self.l = []
        self.nlab = 0
    def __call__(self, s=""):
        for line in s.split("\n"):
            line = line.strip()
            if line:
                self.l.append(("" if line.endswith(":") else "    ") + line)
    def label(self, base="L"):
        self.nlab += 1
        return f"{base}_{self.nlab}"
    def text(self):
        return "\n".join(self.l) + "\n"

def desc(name, vgpr, sgpr=102, accum=None):
    if accum is None:
        accum = min(256, (vgpr + 3) // 4 * 4)
    return f""".p2align 6
.amdhsa_kernel {name}
  .amdhsa_next_free_vgpr {vgpr}
  .amdhsa_next_free_sgpr {sgpr}
  .amdhsa_accum_offset {accum}
  .amdhsa_group_segment_fixed_size 0
  .amdhsa_kernarg_size 104
  .amdhsa_user_sgpr_count 2
  .amdhsa_user_sgpr_kernarg_segment_ptr 1
  .amdhsa_system_sgpr_workgroup_id_x 1
.end_amdhsa_kernel
"""

def module(kernels, header=""):
    s = header
    if len(kernels) == 1:
        k = kernels[0]
        s += f"; @launch grid=({k['grid']},1,1) block=({k['block']},1,1) lds={k['lds']}\n"
    else:
        for k in kernels:
            s += f"; @launch kernel={k['name']} grid=({k['grid']},1,1) block=({k['block']},1,1) lds={k['lds']}\n"
    s += '.amdgcn_target "amdgcn-amd-amdhsa--gfx950"\n.text\n'
    seen = []
    for k in kernels:
        if k['name'] in seen: continue
        seen.append(k['name'])
        s += f".globl {k['name']}\n.p2align 8\n.type {k['name']},@function\n{k['name']}:\n{k['body']}\n"
    s += '.section .rodata,"a"\n'
    seen = []
    for k in kernels:
        if k['name'] in seen: continue
        seen.append(k['name'])
        s += desc(k['name'], k['vgpr'], k.get('sgpr', 102), k.get('accum'))
    return s

def srd(a, d, base, nbytes):
    a(f"s_mov_b32 s{d}, s{base}")
    a(f"s_and_b32 s{d+1}, s{base+1}, 0xffff")
    a(f"s_mov_b32 s{d+2}, {nbytes}")
    a(f"s_mov_b32 s{d+3}, 0x00020000")
```

```python
import re
TRANS = ("v_exp_f32", "v_log_f32", "v_rcp_f32", "v_rsq_f32", "v_sqrt_f32", "v_sin_f32", "v_cos_f32", "v_rcp_iflag_f32")
def regs(tok):
    tok = tok.strip()
    tok = tok.lstrip('-')
    m = re.fullmatch(r"abs\((.*)\)|\|(.*)\|", tok)
    if m: tok = m.group(1) or m.group(2)
    m = re.fullmatch(r"([vas])\[(\d+):(\d+)\]", tok)
    if m: return [(m.group(1), i) for i in range(int(m.group(2)), int(m.group(3)) + 1)]
    m = re.fullmatch(r"([vas])(\d+)", tok)
    if m: return [(m.group(1), int(m.group(2)))]
    if tok == "vcc": return [("s", "vcc_lo"), ("s", "vcc_hi")]
    if tok in ("vcc_lo", "vcc_hi", "m0", "exec_lo", "exec_hi"): return [("s", tok)]
    if tok == "exec": return [("s", "exec_lo"), ("s", "exec_hi")]
    return []
def parse(line):
    line = line.split(";")[0].strip()
    if not line or line.endswith(":") or line.startswith("."): return None
    parts = line.split(None, 1)
    op = parts[0]
    rest = parts[1] if len(parts) > 1 else ""
    ops = []; depth = 0; cur = ""
    for ch in rest:
        if ch in "[(": depth += 1
        if ch in "])": depth -= 1
        if ch == "," and depth == 0: ops.append(cur.strip()); cur = ""
        else: cur += ch
    if cur.strip(): ops.append(cur.strip())
    mods = ""
    if ops:
        last = ops[-1].split()
        ops[-1] = last[0]; mods = " ".join(last[1:])
    d = dict(op=op, ops=ops, mods=mods, line=line)
    R = [regs(o) for o in ops]
    w = []; r = []
    kind = None
    if op.startswith("v_mfma"):
        kind = "mfma"; w = R[0]; r = R[1] + R[2] + R[3]; d["A"] = R[1]; d["B"] = R[2]; d["C"] = R[3]
        d["passes"] = 8 if "32x32x16" in op else 4
    elif op.startswith("buffer_load") or op.startswith("global_load"):
        kind = "vmem"
        if " lds" in " " + mods:
            d["lds"] = True; r = sum(R, []) + [("s", "m0")]
        else:
            w = R[0]; r = sum(R[1:], []); d["load"] = True
    elif op.startswith("buffer_store") or op.startswith("global_store") or op.startswith("buffer_atomic"):
        kind = "vmem"; r = sum(R, []); d["store"] = R[0] if ("x4" in op or "x3" in op) else []
    elif op.startswith("ds_read") or op.startswith("ds_bpermute") or op.startswith("ds_swizzle"):
        kind = "ds"; w = R[0]; r = sum(R[1:], []); d["load"] = True
    elif op.startswith("ds_"):
        kind = "ds"; r = sum(R, [])
    elif op.startswith("v_cmp"):
        kind = "valu"; w = R[0]; r = sum(R[1:], [])
    elif op.startswith("v_permlane"):
        kind = "valu"; w = R[0] + R[1]; r = R[0] + R[1]; d["perm"] = True
    elif op.startswith("v_readfirstlane") or op.startswith("v_readlane"):
        kind = "valu"; w = R[0]; r = sum(R[1:], []); d["rl"] = True
    elif op.startswith("v_"):
        kind = "valu"; w = R[0]; r = sum(R[1:], [])
        if op.startswith("v_fmac") or op.startswith("v_dot2c") or "dpp" in op or "sdwa" in op: r = r + R[0]
        if op.startswith("v_cndmask") and len(ops) == 3: r = r + regs("vcc")
        if op.startswith("v_add_co") or op.startswith("v_sub_co") or op.startswith("v_addc") : w = R[0] + R[1]; r = sum(R[2:], [])
        if "dpp" in op or "quad_perm" in mods or "row_" in mods: d["dpp"] = True
    elif op.startswith("s_load") or op.startswith("s_memtime") or op.startswith("s_memrealtime"):
        kind = "smem"; w = R[0]; r = sum(R[1:], []); d["load"] = True
    elif op in ("s_waitcnt", "s_nop", "s_barrier", "s_endpgm", "s_sleep", "s_setprio") or op.startswith("s_cbranch") or op == "s_branch":
        kind = "ctl"
    elif op.startswith("s_cmp"):
        kind = "salu"; r = sum(R, [])
    elif op.startswith("s_"):
        kind = "salu"; w = R[0]; r = sum(R[1:], [])
        if "saveexec" in op: w = w + regs("exec"); r = r + regs("exec")
    else:
        raise Exception("unknown op " + line)
    d.update(kind=kind, w=set(w), r=set(r))
    return d
def check(lines, verbose=True):
    ins = []
    for i, l in enumerate(lines):
        p = parse(l)
        if p: p["ln"] = i; ins.append(p)
    errs = []
    pos = 0
    for p in ins:
        p["pos"] = pos
        if p["op"] == "s_nop": pos += int(p["ops"][0]) + 1
        else: pos += 1
    def err(p, q, need, why):
        errs.append(f"HAZARD({why}, need {need}): line {q['ln']}: {q['line']}  ->  line {p['ln']}: {p['line']}")
    for i, p in enumerate(ins):
        if p["kind"] == "ctl": continue
        j = i - 1
        while j >= 0 and p["pos"] - ins[j]["pos"] <= 21:
            q = ins[j]; dist = p["pos"] - q["pos"] - 1
            j -= 1
            if q["kind"] == "ctl": continue
            vw = {x for x in q["w"] if x[0] in "va"}; sw = {x for x in q["w"] if x[0] == "s"}
            if q["kind"] == "valu":
                if p["kind"] == "mfma" and vw & p["r"] and dist < 2: err(p, q, 2, "valu->mfma")
                if q["op"].split("_e")[0] in TRANS and p["kind"] in ("valu",) and vw & p["r"] and dist < 1: err(p, q, 1, "trans")
                if q["op"].split("_e")[0] in TRANS and p["kind"] in ("vmem", "ds") and vw & p["r"] and dist < 1: err(p, q, 1, "trans->mem")
                if p.get("rl") and vw & p["r"] and dist < 1: err(p, q, 1, "valu->readlane")
                if p.get("perm") and vw & p["r"] and dist < 2: err(p, q, 2, "valu->permlane")
                if p.get("dpp") and vw & p["r"] and dist < 2: err(p, q, 2, "valu->dpp")
                if sw and p["kind"] == "valu" and sw & p["r"] and dist < 2: err(p, q, 2, "valu sgpr->valu")
                if sw and p["kind"] == "vmem" and sw & p["r"] and dist < 5: err(p, q, 5, "valu sgpr->vmem")
                if sw and p["kind"] == "salu" and sw & p["r"] and dist < 1: err(p, q, 1, "valu sgpr->salu(pad)")
            if q["kind"] == "mfma":
                n = 8 if q["passes"] == 4 else 12
                if p["kind"] in ("valu", "vmem", "ds") and vw & (p["r"] | p["w"]) and dist < n: err(p, q, n, "mfma D->valu/mem")
                if p["kind"] == "mfma":
                    if vw & set(p["A"] + p["B"]) and dist < n: err(p, q, n, "mfma D->mfma AB")
                    if vw & set(p["C"]) and set(p["C"]) != vw and dist < n - 2: err(p, q, n - 2, "mfma D->mfma C partial")
                n2 = 3 if q["passes"] == 4 else 7
                if p["kind"] == "valu" and set(q["C"]) & p["w"] and dist < n2: err(p, q, n2, "mfma C WAR")
            if q["kind"] == "salu" and ("s", "m0") in q["w"] and p.get("lds") and dist < 1: err(p, q, 1, "m0->lds dma")
            if q["kind"] == "vmem" and q.get("store") and set(q["store"]) & p["w"] and dist < 2: err(p, q, 2, "store WAR")
    vmq = []; dsq = []; smq = []
    for p in ins:
        if p["op"] == "s_waitcnt":
            t = " ".join(p["ops"]) + " " + p["mods"]
            m = re.search(r"vmcnt\((\d+)\)", t)
            if m:
                n = int(m.group(1)); vmq = vmq[len(vmq) - n:] if n < len(vmq) else vmq
                if n == 0: vmq = []
            m = re.search(r"lgkmcnt\((\d+)\)", t)
            if m:
                n = int(m.group(1))
                if n == 0: dsq = []; smq = []
                elif not smq: dsq = dsq[len(dsq) - n:] if n < len(dsq) else dsq
            continue
        if p["kind"] == "ctl": continue
        for qn, qq in (("vm", vmq), ("ds", dsq), ("sm", smq)):
            for q in qq:
                if q["w"] & (p["r"] | p["w"]):
                    if qn == "sm" and p["kind"] == "smem": continue
                    errs.append(f"UNWAITED({qn}): line {q['ln']}: {q['line']}  ->  line {p['ln']}: {p['line']}")
        if p["kind"] == "vmem": vmq.append(p); vmq = vmq[-63:] if len(vmq) > 63 else vmq
        if p["kind"] == "ds": dsq.append(p)
        if p["kind"] == "smem": smq.append(p)
    if verbose:
        for e in errs[:40]: print(e)
        print(f"hazard check: {len(ins)} instrs, {len(errs)} problems")
    return errs
```

```python
import sys
from asmlib import *
import hazard

WS_FA, WS_FB, WS_FH, WS_FY = 0x0, 0x200, 0x1000, 0x2000
WS_STAMP = 0x1000000
WS_STATS, WS_CS = 0x10000, 0x20000
WS_KVR, WS_YT, WS_H = 0x100000, 0x400000, 0x800000
P_Q, P_K, P_V, P_SH, P_SK, P_SD, P_W1, P_W3, P_W2, P_OUT, P_DBG, P_WS = 4, 6, 8, 10, 12, 14, 18, 20, 22, 24, 26, 28
S_X, S_W1, S_W3, S_W2, S_WS, S_SK, S_OUT, S_DBG, S_K, S_V, S_SH, S_CODE = 32, 36, 40, 44, 48, 52, 56, 60, 64, 68, 72, 76
sW, sWR, sWC, sRB, sCB, sKI, sWOFF, sXI, sXOFF, sNONCE, sTB, sDB = 80, 81, 82, 83, 84, 85, 86, 87, 88, 89, 90, 91
sT0, sT1, sT2, sLW, sSPIN, sD, sW2OFF, sSTG = 92, 93, 94, 95, 96, 97, 98, 99
sC0, sC1 = 100, 101
sCH = 30; sT3 = 31; sFH = 3
def S(i, n=4): return f"s[{i}:{i+n-1}]"
def V(i, n=4): return f"v[{i}:{i+n-1}]" if n > 1 else f"v{i}"
def A(i, n=4): return f"a[{i}:{i+n-1}]" if n > 1 else f"a{i}"
L_XR = 65536
L_STG = 114688
CP_STRIDE = 4352; CH_STRIDE = 39424; KV_OFF = 34816
BETA = [12, 0, 1, 4, 5, 8, 9, 12]
L_YT, L_YS = 32768, 40960
LOG2E = 1.4426950408889634

class G(Asm):
    def __init__(self, stamps=False):
        super().__init__()
        self.nvm = 0; self.nds = 0; self.stamps = stamps; self.nstamp = 0; self.slow = []
    def vm(self, t):
        self(t); self.nvm += 1; return self.nvm
    def ds(self, t):
        self(t); self.nds += 1; return self.nds
    def wvm(self, tok):
        n = self.nvm - tok
        if n < 63: self(f"s_waitcnt vmcnt({n})")
    def wds(self, tok):
        n = self.nds - tok
        self(f"s_waitcnt lgkmcnt({min(n, 15)})")
    def stamp(self, idx):
        if self.stamps:
            self("s_memtime s[16:17]\ns_waitcnt lgkmcnt(0)")
            self(f"v_writelane_b32 v31, s16, {idx}")
            self("s_memrealtime s[16:17]\ns_waitcnt lgkmcnt(0)")
            self(f"v_writelane_b32 v31, s16, {32+idx}")
    def srd(self, d, base, nbytes, add=None):
        if add is None:
            self(f"s_mov_b32 s{d}, s{base}\ns_and_b32 s{d+1}, s{base+1}, 0xffff")
        else:
            self(f"s_add_u32 s{d}, s{base}, {add}\ns_addc_u32 s{d+1}, s{base+1}, 0\ns_and_b32 s{d+1}, s{d+1}, 0xffff")
        self(f"s_mov_b32 s{d+2}, {nbytes}\ns_mov_b32 s{d+3}, 0x00020000")
    def check_flags(self, tok, vt, n, reload):
        self.wvm(tok)
        Ls = self.label("SLOW"); Lb = self.label("BACK")
        self(f"{Lb}:")
        self(f"v_cmp_ne_u32 vcc, s{sNONCE}, v{vt}")
        for i in range(1, n):
            self(f"v_cmp_ne_u32 s[{sT0}:{sT0+1}], s{sNONCE}, v{vt+i}\ns_nop 0\ns_or_b64 vcc, vcc, s[{sT0}:{sT0+1}]")
        self(f"s_nop 1\ns_cbranch_vccnz {Ls}")
        Lo = self.label("OK")
        self(f"{Lo}:")
        self.slow.append(f"{Ls}:\ns_cmp_eq_u32 s{sSPIN}, 0\ns_cbranch_scc1 {Lo}\ns_sub_u32 s{sSPIN}, s{sSPIN}, 1\ns_sleep 2\n{reload}\ns_waitcnt vmcnt(0)\ns_branch {Lb}")
    def flag_store(self, soff_text_or_reg, vtmp):
        self(f"v_mov_b32 v{vtmp}, s{sNONCE}\nv_mov_b32 v{vtmp+1}, 0\ns_mov_b64 exec, 1")
        t = self.vm(f"buffer_store_dword v{vtmp}, v{vtmp+1}, {S(S_WS)}, {soff_text_or_reg} offen sc1")
        self("s_mov_b64 exec, -1")
        return t
    def get_nonce_issue(self, vt):
        self(f"v_mov_b32 v{vt+1}, 0")
        return self.vm(f"buffer_load_dword v{vt}, v{vt+1}, {S(S_DBG)}, 0 offen sc1")
    def get_nonce_check(self, tok, vt):
        self.wvm(tok)
        Ls = self.label("SLOWN"); Lb = self.label("BACKN"); Lo = self.label("OKN")
        self(f"{Lb}:\nv_readfirstlane_b32 s{sNONCE}, v{vt}\ns_nop 1\ns_cmp_eq_u32 s{sNONCE}, 0\ns_cbranch_scc1 {Ls}\n{Lo}:")
        self.slow.append(f"{Ls}:\ns_cmp_eq_u32 s{sSPIN}, 0\ns_cbranch_scc1 {Lo}\ns_sub_u32 s{sSPIN}, s{sSPIN}, 1\ns_sleep 2\n"
                         f"buffer_load_dword v{vt}, v{vt+1}, {S(S_DBG)}, 0 offen sc1\ns_waitcnt vmcnt(0)\ns_branch {Lb}")

def run_stream(a, main, fill):
    for i, m in enumerate(main):
        a(m)
        for f in fill.get(i, []): f()
def addf(fill, gap, *fs):
    fill.setdefault(gap, []).extend(fs)

vL = 1; vWT = 2; vXR = 6; vWD = 8; vXD = 12; vST = 16; vSD = 20; vLIN = 21
vAF = 32; vCS = 96; vACC = 128
aXF = 224

def prologue_common(a):
    a("s_cmp_ge_u32 s2, 256\ns_cbranch_scc1 L_END")
    a("s_load_dwordx16 s[4:19], s[0:1], 0\ns_load_dwordx8 s[20:27], s[0:1], 64\ns_load_dwordx2 s[28:29], s[0:1], 96")
    a(f"v_lshrrev_b32 v22, 6, v0\nv_and_b32 v{vL}, 63, v0")
    a(f"v_readfirstlane_b32 s{sW}, v22")
    a(f"v_lshlrev_b32 v{vLIN}, 4, v{vL}")
    a(f"s_mov_b32 s{sSPIN}, 20000")
    a(f"s_lshr_b32 s{sWR}, s{sW}, 1\ns_and_b32 s{sWC}, s{sW}, 1\ns_lshl_b32 s{sLW}, s{sW}, 12")
    a(f"s_and_b32 s{sT0}, s2, 7\ns_lshr_b32 s{sT1}, s2, 3\ns_and_b32 s{sDB}, s{sT1}, 7\ns_lshr_b32 s{sT1}, s{sT1}, 3")
    a(f"s_lshl_b32 s{sTB}, s{sT0}, 2\ns_add_u32 s{sTB}, s{sTB}, s{sT1}")
    a(f"s_lshl_b32 s{sCH}, s2, 1\ns_add_u32 s{sCH}, s{sCH}, s{sWR}")

def common_srds(a):
    a.srd(S_WS, P_WS, 0x10000000)
    a.srd(S_DBG, P_DBG, 256)
    a.srd(S_SK, P_SK, 512 * 4096)
    a(f"s_lshl_b32 s{sT0}, s{sDB}, 7")
    a.srd(S_W2, P_W2, 1792 * 1024 - 896, add=f"s{sT0}")
    a.srd(S_OUT, P_OUT, 2048 * 1024)
    a(f"s_mov_b32 s{sC0}, 0xbfb8aa3b\ns_mov_b32 s{sC1}, 0xbfb8aa3b")
    a(f"s_lshl_b32 s{sT0}, s2, 2\ns_load_dword s{sD}, s[{P_SD}:{P_SD+1}], s{sT0}")

def code_prefetch(a, vd):
    a(f"s_getpc_b64 s[{S_CODE}:{S_CODE+1}]")
    Lp = a.label("PC"); a(f"{Lp}:")
    a(f"s_sub_u32 s{S_CODE}, s{S_CODE}, {Lp}-{NAME}_kernel\ns_subb_u32 s{S_CODE+1}, s{S_CODE+1}, 0\ns_and_b32 s{S_CODE+1}, s{S_CODE+1}, 0xffff")
    a(f"s_mov_b32 s{S_CODE+2}, L_CODE_END-{NAME}_kernel\ns_mov_b32 s{S_CODE+3}, 0x00020000")
    a(f"s_lshr_b32 s{sT0}, s2, 3\ns_lshl_b32 s{sT0}, s{sT0}, 2\ns_add_u32 s{sT0}, s{sT0}, s{sW}\ns_and_b32 s{sT0}, s{sT0}, 63\ns_lshl_b32 s{sT0}, s{sT0}, 10")
    a.vm(f"buffer_load_dwordx4 {V(vd)}, v{vLIN}, {S(S_CODE)}, s{sT0} offen")

def stash_setup(a):
    a(f"v_lshrrev_b32 v22, 3, v{vL}\nv_bfe_u32 v23, v{vL}, 1, 2\nv_bfe_u32 v28, v{vL}, 4, 2\nv_xor_b32 v23, v23, v28")
    a(f"v_lshlrev_b32 v22, 10, v22\nv_lshl_or_b32 v22, v23, 5, v22\nv_and_b32 v23, 1, v{vL}\nv_lshl_or_b32 v{vSD}, v23, 4, v22")
    a(f"s_mul_i32 s{sSTG}, s{sW}, 12288\ns_add_u32 s{sSTG}, s{sSTG}, {L_STG}")
    a(f"v_bfe_u32 v22, v{vL}, 2, 3")
    a(f"v_lshrrev_b32 v23, 5, v{vL}\nv_lshlrev_b32 v23, 10, v23\nv_lshl_or_b32 v23, v22, 7, v23")
    a(f"v_and_b32 v28, 3, v{vL}\nv_lshl_or_b32 v23, v28, 3, v23\nv_add_u32 v23, s{sSTG}, v23")
    a("v_lshrrev_b32 v22, 1, v22")
    for mt in range(4):
        a(f"v_xor_b32 v28, {mt}, v22\nv_lshl_add_u32 v{vST+mt}, v28, 5, v23")
    a(f"s_mul_i32 s{sW2OFF}, s{sW}, {14*32*1024}")

def stash_dma(a, kap):
    slot = kap % 3
    toks = []
    def one(i):
        def f():
            a(f"s_add_u32 m0, s{sSTG}, {slot*4096 + i*1024}\ns_add_u32 s{sT2}, s{sW2OFF}, {kap*32768 + i*8192}")
            toks.append(a.vm(f"buffer_load_dwordx4 v{vSD}, {S(S_W2)}, s{sT2} offen lds"))
        return f
    return [one(i) for i in range(4)], toks
def stash_reads(a, kap, toks, out):
    slot = kap % 3
    fs = []
    def first(): a.wvm(toks[-1])
    fs.append(first)
    for mt in range(4):
        for h in range(2):
            def f(mt=mt, h=h):
                out.append(a.ds(f"ds_read_b64_tr_b16 {A(16*kap+4*mt+2*h, 2)}, v{vST+mt} offset:{slot*4096 + h*2048}"))
            fs.append(f)
    return fs

vCA, vCB = 22, 23
def conv_stage_parts(a, vg):
    P = {}
    st = {}
    def pre():
        a(f"s_mul_i32 s{sT3}, s{sWR}, {CH_STRIDE}\ns_lshl_b32 s{sXOFF}, s{sCH}, 12\ns_lshl_b32 s{sT0}, s{sWC}, 3\ns_add_u32 s{sXOFF}, s{sXOFF}, s{sT0}")
        def cb(s_): return s_ * CP_STRIDE + 16 * BETA[s_] + 32
        for reg, j in ((sWOFF, 0), (sT0, 1), (sKI, 2), (sT1, 3)):
            a(f"s_mul_i32 s{reg}, s{sWC}, {cb(4+j) - cb(j)}\ns_add_u32 s{reg}, s{reg}, {cb(j)}\ns_add_u32 s{reg}, s{reg}, s{sT3}")
        a(f"v_add_u32 v28, s{sT0}, v{vLIN}\nv_add_u32 v29, s{sT1}, v{vLIN}")
        a(f"s_add_u32 s{sXI}, s{sXOFF}, 4")
    P['pre'] = [pre]
    gl = []; st['g'] = []
    for i in range(4):
        def f(i=i):
            a.vm(f"buffer_load_dwordx4 {V(vg+6*i)}, v{vLIN}, {S(S_SK)}, s{sXOFF} offen offset:{1024*i}")
        def f2(i=i):
            st['g'].append(a.vm(f"buffer_load_dwordx2 {V(vg+6*i+4, 2)}, v{vLIN}, {S(S_SK)}, s{sXOFF} offen offset:{1024*i+16}"))
        gl += [f, f2]
    P['gload'] = gl
    ev = []; st['e'] = []
    for c in range(2):
        for i in range(4):
            def f(c=c, i=i):
                if i == 0: a(f"s_mov_b32 m0, s{sWOFF if c == 0 else sKI}\ns_nop 0")
                st['e'].append(a.vm(f"buffer_load_dwordx4 v{vLIN}, {S(S_SK)}, s{sXOFF if c == 0 else sXI} offen offset:{1024*i} lds"))
            ev.append(f)
    P['even'] = ev
    od = []
    for i in range(4):
        for c in range(2):
            def f(i=i, c=c):
                if c == 0: a.wvm(st['g'][i])
                t = vg + 24 + 4 * c
                for j in range(4):
                    a(f"v_alignbit_b32 v{t+j}, v{vg+6*i+j+c+1}, v{vg+6*i+j+c}, 16")
                a.ds(f"ds_write_b128 v{28+c}, {V(t)} offset:{1024*i}")
            od.append(f)
    P['odd'] = od
    def zeros():
        t = vg + 24
        a(f"v_bfe_u32 v{t+4}, v{vL}, 1, 3\nv_add_u32 v{t+5}, 7, v{t+4}\nv_and_b32 v{t+5}, 7, v{t+5}")
        a(f"v_lshrrev_b32 v{t+6}, 1, v{t+5}\nv_and_b32 v{t+5}, 1, v{t+5}\nv_lshl_add_u32 v{t+5}, v{t+6}, 2, v{t+5}\nv_min_u32 v{t+5}, 12, v{t+5}")
        a(f"v_and_b32 v{t+6}, 1, v{vL}\nv_add_u32 v{t+5}, v{t+5}, v{t+6}\nv_lshlrev_b32 v{t+5}, 4, v{t+5}")
        a(f"v_mul_u32_u24 v{t+4}, {CP_STRIDE}, v{t+4}\nv_add3_u32 v30, v{t+4}, v{t+5}, s{sT3}")
        for j in range(2): a(f"v_mov_b32 v{t+j}, 0")
        a(f"v_lshlrev_b32 v{t+4}, 3, v{vL}\nv_add_u32 v{t+4}, s{sT3}, v{t+4}")
        a.ds(f"ds_write_b64 v{t+4}, {V(t, 2)} offset:{KV_OFF+4096}")
    P['zeros'] = [zeros]
    def fix():
        t = vg + 24
        Lk = a.label("FIX")
        a.wvm(st['e'][0])
        a(f"s_cmp_lg_u32 s{sWC}, 0\ns_cbranch_scc1 {Lk}")
        for j in range(4): a(f"v_mov_b32 v{t+j}, 0")
        a(f"ds_write_b128 v30, {V(t)}")
        a(f"v_and_b32 v{t+4}, 14, v{vL}\nv_add_u32 v{t+4}, s{sT3}, v{t+4}")
        a(f"ds_read_b128 {V(t)}, v{t+4} offset:{16*BETA[0]+16}")
        a(f"v_or_b32 v{t+5}, 1, v{vL}\nv_sub_u32 v{t+5}, v{t+5}, v{vL}\nv_lshl_add_u32 v30, v{t+5}, 4, v30")
        a("s_waitcnt lgkmcnt(0)")
        a(f"ds_write_b128 v30, {V(t)}")
        a(f"{Lk}:")
    P['fix'] = [fix]
    kv = []; st['k'] = []
    for i in range(2):
        def f(i=i):
            if i == 0:
                a(f"s_lshl_b32 s{sT0}, s{sWC}, 11\ns_add_u32 s{sT1}, s{sT3}, s{sT0}\ns_add_u32 m0, s{sT1}, {KV_OFF}")
                a(f"s_lshl_b32 s{sT1}, s{sCH}, 12\ns_add_u32 s{sT1}, s{sT1}, s{sT0}\ns_add_u32 s{sT1}, s{sT1}, {WS_KVR}")
            st['k'].append(a.vm(f"buffer_load_dwordx4 v{vLIN}, {S(S_WS)}, s{sT1} offen offset:{1024*i} sc1 lds"))
        kv.append(f)
    P['kv'] = kv
    return P, st

def fab_load(a, which, vt):
    txt = f"buffer_load_dwordx2 {V(vt, 2)}, v{vt+2}, {S(S_WS)}, 0 offen offset:{which} sc1"
    a(f"v_lshlrev_b32 v{vt+2}, 3, v{vL}")
    return a.vm(txt), txt

def gemm1(a, cfg):
    a(f"s_sub_u32 s{sT0}, s2, 32\ns_and_b32 s{sT1}, s{sT0}, 7\ns_lshr_b32 s{sT0}, s{sT0}, 3")
    a(f"s_mul_i32 s{sT2}, s{sT0}, 37\ns_lshr_b32 s{sT2}, s{sT2}, 8")
    a(f"s_lshr_b32 s{sRB}, s{sT1}, 1\ns_lshl_b32 s{sRB}, s{sRB}, 2\ns_add_u32 s{sRB}, s{sRB}, s{sT2}")
    a(f"s_mul_i32 s{sT2}, s{sT2}, 7\ns_sub_u32 s{sT0}, s{sT0}, s{sT2}")
    a(f"s_and_b32 s{sCB}, s{sT1}, 1\ns_mul_i32 s{sCB}, s{sCB}, 7\ns_add_u32 s{sCB}, s{sCB}, s{sT0}")
    a(f"s_add_u32 s{sXI}, s{sRB}, s{sCB}\ns_and_b32 s{sXI}, s{sXI}, 7\ns_lshl_b32 s{sKI}, s{sXI}, 1")
    a(f"v_lshrrev_b32 v22, 3, v{vL}\ns_lshl_b32 s{sT0}, s{sW}, 15\nv_lshlrev_b32 v22, 10, v22\nv_add_u32 v22, s{sT0}, v22")
    a(f"v_and_b32 v23, 7, v{vL}\nv_lshrrev_b32 v28, 4, v{vL}\nv_xor_b32 v23, v23, v28\nv_lshl_or_b32 v{vXD}, v23, 4, v22")
    a(f"v_xor_b32 v{vXD+1}, 64, v{vXD}\nv_add_u32 v{vXD+1}, 7168, v{vXD+1}")
    a(f"s_lshl_b32 s{sT0}, s{sWC}, 2\nv_or_b32 v23, s{sT0}, v28\nv_bfe_u32 v22, v{vL}, 1, 3\nv_xor_b32 v22, v22, v23")
    a(f"s_lshl_b32 s{sT0}, s{sW}, 3\nv_add_u32 v23, s{sT0}, v28\nv_mul_u32_u24 v23, 3584, v23\nv_lshl_add_u32 v23, v22, 5, v23")
    a(f"v_and_b32 v22, 1, v{vL}\nv_lshl_add_u32 v{vWD}, v22, 4, v23\nv_add_u32 v{vWD+1}, {4*3584-1024}, v{vWD}")
    a("s_waitcnt lgkmcnt(0)")
    a.stamp(12)
    a(f"s_lshl_b32 s{sT0}, s{sRB}, 17")
    a.srd(S_X, P_Q, 131072, add=f"s{sT0}")
    a(f"s_lshl_b32 s{sT0}, s{sCB}, 8")
    a.srd(S_W1, P_W1, 511 * 3584 + 256, add=f"s{sT0}")
    a.srd(S_W3, P_W3, 511 * 3584 + 256, add=f"s{sT0}")
    wtok = {}; xtok = {}
    def w_dma(s):
        def f0():
            if s > 0: a(f"s_add_u32 s{sKI}, s{sKI}, 1\ns_and_b32 s{sKI}, s{sKI}, 15")
            a(f"s_mul_i32 s{sWOFF}, s{sKI}, 114688\ns_add_u32 m0, s{sLW}, {(s & 3) * 16384}\ns_nop 0")
            a.vm(f"buffer_load_dwordx4 v{vWD}, {S(S_W1)}, s{sWOFF} offen lds")
        def f1(): a.vm(f"buffer_load_dwordx4 v{vWD+1}, {S(S_W1)}, s{sWOFF} offen offset:1024 lds")
        def f2():
            a(f"s_add_u32 m0, s{sLW}, {(s & 3) * 16384 + 2048}\ns_nop 0")
            a.vm(f"buffer_load_dwordx4 v{vWD}, {S(S_W3)}, s{sWOFF} offen lds")
        def f3(): wtok[s] = a.vm(f"buffer_load_dwordx4 v{vWD+1}, {S(S_W3)}, s{sWOFF} offen offset:1024 lds")
        return [f0, f1, f2, f3]
    def x_dma(St, half):
        def f0():
            if half == 0:
                if St > 0: a(f"s_add_u32 s{sXI}, s{sXI}, 1\ns_and_b32 s{sXI}, s{sXI}, 7")
                a(f"s_lshl_b32 s{sXOFF}, s{sXI}, 7")
            else:
                a(f"s_add_u32 s{sXOFF}, s{sXOFF}, 16384")
            a(f"s_add_u32 m0, s{sLW}, {L_XR + (St % 3) * 16384 + half * 2048}\ns_nop 0")
            a.vm(f"buffer_load_dwordx4 v{vXD}, {S(S_X)}, s{sXOFF} offen lds")
        def f1(): xtok[(St, half)] = a.vm(f"buffer_load_dwordx4 v{vXD+1}, {S(S_X)}, s{sXOFF} offen offset:1024 lds")
        return [f0, f1]
    for f in x_dma(0, 0) + x_dma(0, 1) + w_dma(0) + w_dma(1): f()
    a.stamp(13)
    code_prefetch(a, 24)
    for f in x_dma(1, 0) + x_dma(1, 1) + w_dma(2) + w_dma(3) + x_dma(2, 0) + x_dma(2, 1): f()
    a.stamp(14)
    common_srds(a)
    a(f"v_lshrrev_b32 v28, 4, v{vL}\nv_bfe_u32 v22, v{vL}, 2, 2\nv_and_b32 v23, 1, v28\nv_lshl_or_b32 v23, v23, 2, v22")
    a(f"v_lshlrev_b32 v29, 12, v28\nv_lshl_or_b32 v29, v22, 8, v29\nv_and_b32 v22, 3, v{vL}\nv_lshl_or_b32 v29, v22, 3, v29")
    a(f"s_lshl_b32 s{sT0}, s{sWC}, 2\nv_xor_b32 v23, s{sT0}, v23")
    for m in range(4):
        a(f"v_xor_b32 v22, {m}, v23\nv_lshl_add_u32 v{vWT+m}, v22, 5, v29")
    a(f"v_and_b32 v22, 15, v{vL}\nv_lshrrev_b32 v23, 1, v22\nv_xor_b32 v23, v23, v28\ns_lshl_b32 s{sT0}, s{sWR}, 13\ns_add_u32 s{sT0}, s{sT0}, {L_XR}")
    a(f"v_lshlrev_b32 v22, 7, v22\nv_lshl_or_b32 v22, v23, 4, v22\nv_add_u32 v{vXR}, s{sT0}, v22\nv_xor_b32 v{vXR+1}, 64, v{vXR}")
    stash_setup(a)
    a("s_waitcnt lgkmcnt(0)")
    a.stamp(1)
    def reads(s):
        b = s & 1; fs = []
        for mt in range(8):
            for h in range(2):
                def f(mt=mt, h=h):
                    a.ds(f"ds_read_b64_tr_b16 {V(vAF + 32*b + 4*mt + 2*h, 2)}, v{vWT + (mt & 3)} offset:{(s & 3)*16384 + (mt >> 2)*2048 + h*1024}")
                fs.append(f)
        xs = []
        for nt in range(4):
            def f(nt=nt):
                a.ds(f"ds_read_b128 {A(aXF + 16*b + 4*nt)}, v{vXR + (s & 1)} offset:{((s >> 1) % 3)*16384 + nt*2048}")
            xs.append(f)
        return fs, xs
    def sync(s):
        def f():
            if s + 1 <= 15:
                a.wvm(max(wtok[s + 1], xtok[((s + 1) >> 1, 1)]))
            a("s_waitcnt lgkmcnt(0)\ns_barrier")
        return f
    a.wvm(max(wtok[0], xtok[(0, 1)])); a("s_barrier")
    a.stamp(2)
    fa_, fx_ = reads(0)
    for f in fa_ + fx_: f()
    sync(0)()
    main = []; fill = {}
    for s in range(16):
        b = s & 1
        for mt in range(8):
            for nt in range(4):
                acc = V(vACC + 16 * mt + 4 * nt)
                main.append(f"v_mfma_f32_16x16x32_bf16 {acc}, {V(vAF + 32*b + 4*mt)}, {A(aXF + 16*b + 4*nt)}, {'0' if s == 0 else acc}")
    SY = 28
    for s in range(16):
        base = 32 * s - (32 - SY) if s > 0 else 0
        if s + 1 <= 15:
            ra, rx = reads(s + 1)
            order = ra[:4] + rx[:1] + ra[4:8] + rx[1:2] + ra[8:12] + rx[2:3] + ra[12:] + rx[3:]
            for i, f in enumerate(order): addf(fill, base + i, f)
            addf(fill, 32 * s + SY - 1, sync(s + 1))
        d = []
        if s + 4 <= 15: d += w_dma(s + 4)
        if s % 2 == 1 and (s - 1) // 2 + 3 <= 7: d += x_dma((s - 1) // 2 + 3, 0)
        if s % 2 == 0 and s >= 2 and (s - 2) // 2 + 3 <= 7: d += x_dma((s - 2) // 2 + 3, 1)
        for i, f in enumerate(d): addf(fill, 32 * s + 15 + 2 * i, f)
    st = {}
    def nonce_issue(): st['n'] = a.get_nonce_issue(24)
    def nonce_check(): a.get_nonce_check(st['n'], 24)
    addf(fill, 32 * 6 + 2, nonce_issue); addf(fill, 32 * 9 + 26, nonce_check)
    def fa_issue(): st['fa'] = fab_load(a, WS_FA, 24)
    def fa_check(): a.check_flags(st['fa'][0], 24, 2, st['fa'][1])
    addf(fill, 32 * 11 + 26, fa_issue); addf(fill, 32 * 13 + 16, fa_check)
    def cs_loads(i):
        def f():
            if i == 0:
                a(f"v_lshrrev_b32 v24, 4, v{vL}\nv_lshlrev_b32 v24, 4, v24\ns_lshl_b32 s{sT0}, s{sCB}, 9\ns_lshl_b32 s{sT1}, s{sWC}, 8\ns_add_u32 s{sT0}, s{sT0}, s{sT1}\ns_add_u32 s{sT0}, s{sT0}, {WS_CS}")
                a(f"s_add_u32 s{sT1}, s{sT0}, 7168")
            st['cs'] = a.vm(f"buffer_load_dwordx4 {V(vCS + 4*i)}, v24, {S(S_WS)}, s{sT0 if i < 4 else sT1} offen offset:{64*(i & 3)} sc1")
        return f
    for i in range(8): addf(fill, 32 * 13 + 17 + i, cs_loads(i))
    def st_loads(i):
        def f():
            if i == 0:
                a(f"v_and_b32 v24, 15, v{vL}\nv_lshlrev_b32 v24, 4, v24\ns_lshl_b32 s{sT0}, s{sRB}, 11\ns_lshl_b32 s{sT1}, s{sWR}, 10\ns_add_u32 s{sT0}, s{sT0}, s{sT1}\ns_add_u32 s{sT0}, s{sT0}, {WS_STATS}")
            st['st'] = a.vm(f"buffer_load_dwordx4 {V(vAF + 4*i)}, v24, {S(S_WS)}, s{sT0} offen offset:{256*i} sc1")
        return f
    for i in range(4): addf(fill, 32 * 15 + i, st_loads(i))
    sd = {}; sr = []
    for kap, (gd, gr) in cfg['stash_g1'].items():
        fs, toks = stash_dma(a, kap); sd[kap] = toks
        for i, f in enumerate(fs): addf(fill, gd + i * cfg.get('stash_dstep', 1), f)
        if gr is not None:
            for i, f in enumerate(stash_reads(a, kap, toks, sr)): addf(fill, gr + i, f)
    run_stream(a, main, fill)
    a.stamp(3)
    return st, sd, sr

def gemm1_epilogue(a, cfg, st, side):
    a.wvm(max(st['cs'], st['st']))
    a(f"s_lshl_b32 s{sT0}, s{sRB}, 1\ns_add_u32 s{sT0}, s{sT0}, s{sWR}\ns_lshl_b32 s{sT0}, s{sT0}, 7\ns_lshl_b32 s{sT1}, s{sCB}, 3\ns_add_u32 s{sT0}, s{sT0}, s{sT1}")
    a(f"s_lshl_b32 s{sT1}, s{sWC}, 2\ns_add_u32 s{sT0}, s{sT0}, s{sT1}\ns_add_u32 s{sFH}, s{sT0}, {WS_FH}")
    a(f"s_lshl_b32 s{sT0}, s{sRB}, 3\ns_lshl_b32 s{sT1}, s{sWR}, 2\ns_add_u32 s{sT0}, s{sT0}, s{sT1}\ns_mul_i32 s{sT0}, s{sT0}, 56")
    a(f"s_lshl_b32 s{sT1}, s{sCB}, 2\ns_add_u32 s{sT0}, s{sT0}, s{sT1}\ns_lshl_b32 s{sT1}, s{sWC}, 1\ns_add_u32 s{sT0}, s{sT0}, s{sT1}")
    a(f"s_lshl_b32 s{sT0}, s{sT0}, 10\ns_add_u32 s{sRB}, s{sT0}, {WS_H}")
    a("s_nop 4")
    T = 80; HO = 88
    htok = []
    k = 0
    for nt in range(4):
        sb = vAF + 4 * nt
        for mp in range(2):
            ho = HO + 4 * (k & 1)
            for mm in range(2):
                mt = 2 * mp + mm
                g = vACC + 16 * mt + 4 * nt; u = vACC + 16 * (mt + 4) + 4 * nt
                for q in (0, 2):
                    a(f"v_pk_fma_f32 {V(g+q,2)}, {V(vCS+4*mt+q,2)}, {V(sb,2)}, {V(g+q,2)} op_sel_hi:[1,0,1]")
                for q in (0, 2):
                    a(f"v_pk_mul_f32 {V(T+q,2)}, {V(g+q,2)}, {V(sb,2)} op_sel:[0,1] op_sel_hi:[1,1]")
                for q in (0, 2):
                    a(f"v_pk_fma_f32 {V(u+q,2)}, {V(vCS+16+4*mt+q,2)}, {V(sb,2)}, {V(u+q,2)} op_sel_hi:[1,0,1]")
                for q in range(4): a(f"v_exp_f32 v{T+q}, v{T+q}")
                for q in (0, 2):
                    a(f"v_pk_mul_f32 {V(g+q,2)}, {V(g+q,2)}, {V(u+q,2)}")
                for q in (0, 2):
                    a(f"v_pk_fma_f32 {V(T+q,2)}, {V(T+q,2)}, {V(sb+2,2)}, {V(sb+2,2)} op_sel_hi:[1,0,0]")
                for q in range(4): a(f"v_rcp_f32 v{T+q}, v{T+q}")
                a("s_nop 0")
                for q in (0, 2):
                    a(f"v_pk_mul_f32 {V(g+q,2)}, {V(g+q,2)}, {V(T+q,2)}")
                for q in (0, 2):
                    a(f"v_cvt_pk_bf16_f32 v{ho+2*mm+q//2}, v{g+q}, v{g+q+1}")
                for f in side.get(2 * k + mm, []): f()
            if mp == 0 and nt > 0: a(f"s_add_u32 s{sRB}, s{sRB}, {56*1024}")
            htok.append(a.vm(f"buffer_store_dwordx4 {V(ho)}, v{vLIN}, {S(S_WS)}, s{sRB} offen offset:{1024*mp} sc1"))
            k += 1
    return htok

def conv(a, cfg, hooks, after):
    vA0 = 32; vY = 160; vAD = 192
    a(f"v_and_b32 v24, 15, v{vL}\nv_lshrrev_b32 v25, 4, v{vL}")
    a(f"v_and_b32 v26, 7, v24\nv_lshrrev_b32 v27, 1, v26\nv_and_b32 v26, 1, v26\nv_lshl_add_u32 v26, v27, 2, v26\nv_min_u32 v26, 12, v26")
    a(f"v_add_u32 v27, 1, v24\nv_lshrrev_b32 v28, 3, v27\nv_and_b32 v27, 7, v27\nv_add3_u32 v26, v26, v28, v25\nv_lshlrev_b32 v26, 4, v26")
    a(f"v_mul_u32_u24 v27, {CP_STRIDE}, v27\ns_mul_i32 s{sT3}, s{sWR}, {CH_STRIDE}\ns_lshl_b32 s{sT0}, s{sWC}, 8\ns_add_u32 s{sT3}, s{sT3}, s{sT0}")
    a(f"v_add3_u32 v{vCA}, v26, v27, s{sT3}")
    a(f"v_lshlrev_b32 v26, 5, v24\nv_lshlrev_b32 v27, 4, v25\nv_sub_u32 v26, v27, v26\ns_add_u32 s{sT3}, s{sT3}, {KV_OFF+480}\nv_add_u32 v{vCB}, s{sT3}, v26")
    def rd(rho):
        b = vA0 + 64 * (rho & 1); fs = []
        toks = {}
        def fA(x): toks[('A', x)] = a.ds(f"ds_read_b128 {V(b + 4*x)}, v{vCA} offset:{64*(8*x+rho)}")
        def fB(x): toks[('B', x)] = a.ds(f"ds_read_b128 {V(b + 32 + 4*x)}, v{vCB} offset:{64*(56 - 8*x + rho)}")
        fs.append(lambda: fB(0))
        for x in range(8): fs.append(lambda x=x: fA(x))
        for x in range(1, 8): fs.append(lambda x=x: fB(x))
        return fs, toks
    fs0, t0 = rd(0)
    for f in fs0: f()
    a(f"v_lshlrev_b32 v26, 3, v25\nv_add_u32 v26, v26, v24\nv_sub_u32 v26, 15, v26")
    a(f"s_lshl_b32 s{sT0}, s{sWR}, 4\ns_lshr_b32 s{sT0}, s{sD}, s{sT0}\ns_and_b32 s{sT0}, s{sT0}, 0xffff")
    a(f"v_and_b32 v27, 1, v26\nv_lshlrev_b32 v27, 4, v27\nv_lshlrev_b32 v27, v27, s{sT0}\nv_ashrrev_i32 v26, 1, v26".replace(f"v_lshlrev_b32 v27, v27, s{sT0}", f"v_mov_b32 v28, s{sT0}\nv_lshlrev_b32 v27, v27, v28"))
    for i in range(4):
        a(f"v_cmp_eq_u32 vcc, {i}, v26\ns_nop 1\nv_cndmask_b32 v{vAD+i}, 0, v27, vcc")
    main = []; fill = {}; tk = {0: t0}
    for rho in range(4):
        b = vA0 + 64 * (rho & 1)
        g0 = len(main)
        for bh in range(8):
            for x in range(8 - bh):
                acc = V(vY + 4 * (x + bh))
                first = (rho == 0 and bh == 0)
                main.append(f"v_mfma_f32_16x16x32_bf16 {acc}, {V(b + 4*x)}, {V(b + 32 + 4*bh)}, {'0' if first else acc}")
        if rho < 3:
            fs, tk[rho + 1] = rd(rho + 1)
            for i, f in enumerate(fs): addf(fill, g0 + 2 + i, f)
            addf(fill, g0 + 35, lambda: a("s_waitcnt lgkmcnt(0)"))
        if rho == 0:
            def dterm():
                Lk = a.label("DT")
                a(f"s_cmp_lg_u32 s{sWC}, 0\ns_cbranch_scc1 {Lk}")
                for j in range(8):
                    a(f"v_mfma_f32_16x16x32_bf16 {V(vY+4*j)}, {V(vAD)}, {V(vA0 + 32 + 4*j)}, {V(vY+4*j)}")
                a(f"{Lk}:")
            fill[g0 + 35].insert(0, dterm)
    for gp, fs in hooks.items(): addf(fill, gp, *fs)
    a("s_waitcnt lgkmcnt(0)")
    run_stream(a, main, fill)
    a.stamp(6)
    after()
    a(f"v_add_u32 v24, s{sSTG}, v{vLIN}\ns_xor_b32 s{sT0}, s{sW}, 1\ns_mul_i32 s{sT0}, s{sT0}, 12288\ns_add_u32 s{sT0}, s{sT0}, {L_STG}\nv_add_u32 v25, s{sT0}, v{vLIN}")
    L1 = a.label("CX"); L2 = a.label("CX"); L3 = a.label("CX"); L4 = a.label("CX")
    a(f"s_nop 2\ns_cmp_lg_u32 s{sWC}, 0\ns_cbranch_scc1 {L1}")
    for i in range(4): a(f"ds_write_b128 v24, {V(vY + 16 + 4*i)} offset:{1024*i}")
    a(f"s_branch {L2}\n{L1}:")
    for i in range(4): a(f"ds_write_b128 v24, {V(vY + 4*i)} offset:{1024*i}")
    for i in range(16): a(f"v_mov_b32 v{vY+i}, v{vY+16+i}")
    a(f"{L2}:")
    a(f"v_and_b32 v26, 15, v{vL}\nv_lshlrev_b32 v26, 5, v26\nv_bfe_u32 v27, v{vL}, 4, 1\nv_lshl_or_b32 v26, v27, 9, v26\nv_lshrrev_b32 v27, 5, v{vL}\nv_lshl_or_b32 v26, v27, 4, v26")
    a(f"s_lshl_b32 s{sT0}, s{sCH}, 12\ns_lshl_b32 s{sT1}, s{sWC}, 11\ns_add_u32 s{sT0}, s{sT0}, s{sT1}\ns_add_u32 s{sT0}, s{sT0}, {WS_YT}")
    a("s_waitcnt lgkmcnt(0)\ns_barrier")
    for i in range(4): a(f"ds_read_b128 {V(vY + 16 + 4*i)}, v25 offset:{1024*i}")
    ytok = None
    for pr in range(2):
        a(f"s_waitcnt lgkmcnt({2 - 2*pr})")
        for i in (2 * pr, 2 * pr + 1):
            for q in (0, 2):
                a(f"v_pk_add_f32 {V(vY+4*i+q,2)}, {V(vY+4*i+q,2)}, {V(vY+16+4*i+q,2)}")
        o = vAD + 4 + 4 * pr
        for i in (0, 1):
            for q in (0, 2):
                a(f"v_cvt_pk_bf16_f32 v{o+2*i+q//2}, v{vY+4*(2*pr+i)+q}, v{vY+4*(2*pr+i)+q+1}")
        a(f"s_nop 1\nv_permlane16_swap_b32 v{o}, v{o+2}\nv_permlane16_swap_b32 v{o+1}, v{o+3}")
        ytok = a.vm(f"buffer_store_dwordx4 {V(o)}, v26, {S(S_WS)}, s{sT0} offen offset:{1024*pr} sc1")
    return ytok

vH = 32
def h_dest(nt, kap):
    return V(vH + 4 * ((14 * nt + kap) % 28))
def h_setup(a):
    a(f"s_lshl_b32 s{sT0}, s{sTB}, 2\ns_mul_i32 s{sT0}, s{sT0}, 56\ns_mul_i32 s{sT1}, s{sW}, 14\ns_add_u32 s{sT0}, s{sT0}, s{sT1}\ns_lshl_b32 s{sT0}, s{sT0}, 10\ns_add_u32 s{sWOFF}, s{sT0}, {WS_H}")
def h_load(a, ht, nt, kap):
    def f():
        if kap % 4 == 0: a(f"s_add_u32 s{sXOFF}, s{sWOFF}, {nt*56*1024 + kap*1024}")
        ht[(nt, kap)] = a.vm(f"buffer_load_dwordx4 {h_dest(nt, kap)}, v{vLIN}, {S(S_WS)}, s{sXOFF} offen offset:{1024*(kap % 4)} sc1")
    return f
def fh_issue(a, st):
    a(f"v_min_u32 v29, 27, v{vL}\nv_lshlrev_b32 v29, 2, v29\ns_lshl_b32 s{sT0}, s{sTB}, 7\ns_add_u32 s{sKI}, s{sT0}, {WS_FH}")
    st['fh_txt'] = f"buffer_load_dword v28, v29, {S(S_WS)}, s{sKI} offen sc1"
    st['fh'] = a.vm(st['fh_txt'])

def gemm2(a, cfg, ytok, ht):
    vO = 200
    vSX = 232
    vXP = 248
    PART = [144, 160, 176, 144]
    LA = cfg['LA']; LA0 = cfg['LA0']
    for i in range(LA0, LA): h_load(a, ht, i // 14, i % 14)()
    a(f"v_lshrrev_b32 v24, 4, v{vL}\nv_and_b32 v25, 15, v{vL}\nv_lshlrev_b32 v27, 10, v24\nv_lshl_or_b32 v27, v25, 3, v27")
    a(f"s_lshl_b32 s{sT0}, s{sTB}, 16\ns_lshl_b32 s{sT1}, s{sW}, 12\ns_add_u32 s{sT0}, s{sT0}, s{sT1}\ns_lshl_b32 s{sT1}, s{sDB}, 7\ns_add_u32 s{sRB}, s{sT0}, s{sT1}")
    a.srd(S_X, P_Q, 2048 * 1024)
    for nt in range(4):
        a(f"s_add_u32 s{sT0}, s{sRB}, {nt*16384}")
        a.vm(f"buffer_load_dwordx2 {V(vXP + 2*nt, 2)}, v27, {S(S_X)}, s{sT0} offen")
    a(f"v_lshlrev_b32 v28, 4, v24\ns_lshl_b32 s{sT0}, s{sTB}, 10\ns_lshl_b32 s{sT1}, s{sW}, 6\ns_add_u32 s{sT0}, s{sT0}, s{sT1}\ns_add_u32 s{sT0}, s{sT0}, {WS_STATS}")
    for nt in range(4):
        xs = a.vm(f"buffer_load_dwordx4 {V(vSX + 4*nt)}, v28, {S(S_WS)}, s{sT0} offen offset:{256*nt} sc1")
    a(f"v_and_b32 v28, 7, v25\nv_lshlrev_b32 v29, 8, v25\nv_add_u32 v29, s{sLW}, v29")
    for mt in range(4):
        a(f"v_add_u32 v30, {4*mt}, v24\nv_xor_b32 v30, v30, v28\nv_lshl_add_u32 v{2+mt}, v30, 4, v29")
    a(f"s_lshl_b32 s{sT0}, s{sW}, 2\nv_add_u32 v28, s{sT0}, v24\nv_and_b32 v29, 7, v28\nv_xor_b32 v29, v29, v25\nv_lshlrev_b32 v28, 8, v28\nv_lshl_or_b32 v6, v29, 4, v28")
    main = []; fill = {}
    for nt in range(4):
        for kap in range(14):
            for mt in range(4):
                acc = V(vO + 16 * (nt & 1) + 4 * mt)
                main.append(f"v_mfma_f32_16x16x32_bf16 {acc}, {A(16*kap + 4*mt)}, {h_dest(nt, kap)}, {'0' if kap == 0 else acc}")
            g = 56 * nt + 4 * kap - 1
            if g >= 0: addf(fill, g, lambda nt=nt, kap=kap: a.wvm(ht[(nt, kap)]))
    for i in range(LA, 56): addf(fill, 4 * (i - LA) + 4, h_load(a, ht, i // 14, i % 14))
    st = {}
    def y_publish():
        a.wvm(ytok)
        a(f"s_lshl_b32 s{sT0}, s{sWC}, 11\ns_lshl_b32 s{sT1}, s{sCH}, 2\ns_add_u32 s{sT0}, s{sT0}, s{sT1}\ns_add_u32 s{sT0}, s{sT0}, {WS_FY}")
        a.flag_store(f"s{sT0}", 28)
    addf(fill, cfg['y_pub'], y_publish)
    def fy_issue():
        a(f"v_lshlrev_b32 v9, 2, v{vL}\ns_lshr_b32 s{sT0}, s{sTB}, 4\ns_lshl_b32 s{sT0}, s{sT0}, 11\ns_lshl_b32 s{sT1}, s{sDB}, 8\ns_add_u32 s{sT0}, s{sT0}, s{sT1}\ns_add_u32 s{sKI}, s{sT0}, {WS_FY}")
        st['txt'] = f"buffer_load_dword v8, v9, {S(S_WS)}, s{sKI} offen sc1"
        st['fy'] = a.vm(st['txt'])
    def fy_check():
        a.check_flags(st['fy'], 8, 1, st['txt'])
        a(f"v_lshrrev_b32 v8, 3, v{vL}\nv_and_b32 v9, 7, v{vL}\nv_lshlrev_b32 v8, 12, v8\nv_lshl_or_b32 v8, v9, 4, v8")
        a(f"s_lshl_b32 s{sT0}, s{sDB}, 18\ns_lshl_b32 s{sT1}, s{sW}, 16\ns_add_u32 s{sT0}, s{sT0}, s{sT1}\ns_lshl_b32 s{sT1}, s{sTB}, 7\ns_add_u32 s{sT0}, s{sT0}, s{sT1}\ns_add_u32 s{sT0}, s{sT0}, {WS_YT}")
        a(f"s_lshl_b32 s{sT1}, s{sW}, 11\ns_add_u32 m0, s{sT1}, {L_YT}\ns_nop 0")
        a.vm(f"buffer_load_dwordx4 v8, {S(S_WS)}, s{sT0} offen sc1 lds")
        a(f"s_add_u32 s{sT0}, s{sT0}, 32768\ns_add_u32 m0, s{sT1}, {L_YT+1024}\ns_nop 0")
        st['yt'] = a.vm(f"buffer_load_dwordx4 v8, {S(S_WS)}, s{sT0} offen sc1 lds")
    addf(fill, cfg['fy_issue'], fy_issue); addf(fill, cfg['fy_check'], fy_check)
    def xwrite(nt):
        def f():
            for mt in range(4):
                a(f"ds_write_b128 v{2+mt}, {V(vO + 16*(nt & 1) + 4*mt)} offset:{(nt & 1)*16384}")
        return f
    def xsync(nt):
        def f():
            if nt == cfg['y_pass']: a.wvm(st['yt'])
            a("s_waitcnt lgkmcnt(0)\ns_barrier")
            for w in range(4):
                a(f"ds_read_b128 {V(PART[nt] + 4*w)}, v6 offset:{(nt & 1)*16384 + 4096*w}")
        return f
    def ytrans():
        Y = 192; X = 12
        a(f"v_lshrrev_b32 v8, 2, v{vL}\nv_and_b32 v9, 3, v{vL}\nv_lshlrev_b32 v8, 7, v8\nv_lshl_or_b32 v8, v9, 5, v8")
        a(f"s_lshl_b32 s{sT0}, s{sW}, 3\ns_add_u32 s{sT0}, s{sT0}, {L_YT}\nv_add_u32 v8, s{sT0}, v8")
        for q in range(4): a(f"ds_read_b64_tr_b16 {V(Y+2*q, 2)}, v8 offset:{2048*q}")
        a(f"s_lshl_b32 s{sT0}, s{sW}, 11\ns_add_u32 s{sT0}, s{sT0}, {L_YS}\nv_lshlrev_b32 v9, 7, v25\nv_add_u32 v9, s{sT0}, v9")
        a("s_waitcnt lgkmcnt(0)")
        for q in range(4):
            a(f"v_add_u32 v10, {4*q}, v24\nv_xor_b32 v10, v10, v25\nv_lshl_add_u32 v10, v10, 3, v9")
            a(f"ds_write_b64 v10, {V(Y+2*q, 2)}")
        a(f"v_lshlrev_b32 v9, 7, v24\nv_add_u32 v9, s{sT0}, v9")
        a("s_waitcnt lgkmcnt(0)")
        for nt in range(4):
            a(f"v_add_u32 v10, {4*nt}, v24\nv_xor_b32 v10, v10, v25\nv_lshl_add_u32 v10, v10, 3, v9")
            a(f"ds_read_b64 {V(Y+2*nt, 2)}, v10 offset:{512*nt}")
        a.wvm(xs)
        a("s_waitcnt lgkmcnt(0)")
        for nt in range(4):
            sb = vSX + 4 * nt
            a(f"v_lshlrev_b32 v{X}, 16, v{vXP+2*nt}\nv_and_b32 v{X+1}, 0xffff0000, v{vXP+2*nt}\nv_lshlrev_b32 v{X+2}, 16, v{vXP+2*nt+1}\nv_and_b32 v{X+3}, 0xffff0000, v{vXP+2*nt+1}")
            for q in (0, 2): a(f"v_pk_add_f32 {V(X+q,2)}, {V(X+q,2)}, {V(sb,2)} op_sel_hi:[1,0]")
            for q in (0, 2): a(f"v_pk_mul_f32 {V(X+q,2)}, {V(X+q,2)}, {V(sb+2,2)} op_sel:[0,1] op_sel_hi:[1,1]")
            a(f"v_lshlrev_b32 v{sb}, 16, v{Y+2*nt}\nv_and_b32 v{sb+1}, 0xffff0000, v{Y+2*nt}\nv_lshlrev_b32 v{sb+2}, 16, v{Y+1+2*nt}\nv_and_b32 v{sb+3}, 0xffff0000, v{Y+1+2*nt}")
            for q in (0, 2): a(f"v_pk_mul_f32 {V(sb+q,2)}, {V(sb+q,2)}, {V(X+q,2)}")
    def final(nt):
        def f():
            p = PART[nt]; sb = vSX + 4 * nt
            a("s_waitcnt lgkmcnt(0)")
            for q in (0, 2):
                a(f"v_pk_add_f32 {V(p+q,2)}, {V(p+q,2)}, {V(p+4+q,2)}\nv_pk_add_f32 {V(p+8+q,2)}, {V(p+8+q,2)}, {V(p+12+q,2)}")
            for q in (0, 2): a(f"v_pk_add_f32 {V(p+q,2)}, {V(p+q,2)}, {V(p+8+q,2)}")
            for q in (0, 2): a(f"v_pk_mul_f32 {V(p+4+q,2)}, {V(p+q,2)}, s[{sC0}:{sC1}]")
            for q in range(4): a(f"v_exp_f32 v{p+4+q}, v{p+4+q}")
            a(f"v_lshlrev_b32 v{p+8}, 16, v{vXP+2*nt}\nv_and_b32 v{p+9}, 0xffff0000, v{vXP+2*nt}\nv_lshlrev_b32 v{p+10}, 16, v{vXP+2*nt+1}\nv_and_b32 v{p+11}, 0xffff0000, v{vXP+2*nt+1}")
            for q in (0, 2): a(f"v_pk_add_f32 {V(p+4+q,2)}, {V(p+4+q,2)}, 1.0 op_sel_hi:[1,0]")
            for q in range(4): a(f"v_rcp_f32 v{p+4+q}, v{p+4+q}")
            for q in (0, 2): a(f"v_pk_mul_f32 {V(p+q,2)}, {V(p+q,2)}, {V(sb+q,2)}")
            for q in (0, 2): a(f"v_pk_fma_f32 {V(p+q,2)}, {V(p+q,2)}, {V(p+4+q,2)}, {V(p+8+q,2)}")
            a(f"v_cvt_pk_bf16_f32 v{p+4}, v{p}, v{p+1}\nv_cvt_pk_bf16_f32 v{p+5}, v{p+2}, v{p+3}")
            a(f"s_add_u32 s{sT0}, s{sRB}, {nt*16384}")
            a.vm(f"buffer_store_dwordx2 {V(p+4, 2)}, v27, {S(S_OUT)}, s{sT0} offen")
        return f
    yp = cfg['y_pass']
    for nt in range(3):
        addf(fill, 56 * (nt + 1) + 8, xwrite(nt))
        addf(fill, 56 * (nt + 1) + 16, xsync(nt))
        if nt == yp: addf(fill, 56 * (nt + 1) + 17, ytrans)
    for nt in range(3):
        addf(fill, 56 * (max(nt, yp) + 1) + 24 + 4 * nt, final(nt))
    a.wvm(ht[(0, 0)])
    a.stamp(8)
    run_stream(a, main, fill)
    a.stamp(9)
    a("s_nop 7")
    xwrite(3)(); xsync(3)(); final(3)()

def helper(a, cfg):
    sHW = sCB
    a(f"s_lshl_b32 s{sHW}, s2, 2\ns_add_u32 s{sHW}, s{sHW}, s{sW}")
    a(f"v_lshrrev_b32 v2, 3, v{vL}\nv_and_b32 v3, 7, v{vL}\nv_lshlrev_b32 v3, 4, v3")
    a(f"v_lshl_or_b32 v4, v2, 10, v3")
    a(f"v_mul_u32_u24 v5, 3584, v2\nv_add_u32 v5, v5, v3")
    a(f"v_lshl_or_b32 v6, v2, 14, v3")
    a("s_waitcnt lgkmcnt(0)")
    a.stamp(12)
    a.srd(S_DBG, P_DBG, 256)
    Ln = a.label("NON")
    a(f"s_cmp_lg_u32 s{sHW}, 0\ns_cbranch_scc1 {Ln}")
    a(f"s_memrealtime s[{sT0}:{sT0+1}]\ns_waitcnt lgkmcnt(0)\ns_or_b32 s{sT0}, s{sT0}, 1\nv_mov_b32 v8, s{sT0}\nv_mov_b32 v9, 0\ns_mov_b64 exec, 1")
    a(f"buffer_store_dword v8, v9, {S(S_DBG)}, 0 offen sc1\ns_mov_b64 exec, -1\n{Ln}:")
    a.srd(S_X, P_Q, 2048 * 1024)
    vS = 32; vC = 96
    a(f"s_lshl_b32 s{sT0}, s{sHW}, 14\ns_add_u32 s{sT1}, s{sT0}, 8192")
    stt = []
    for h in range(2):
        for i in range(8):
            stt.append(a.vm(f"buffer_load_dwordx4 {V(vS + 32*h + 4*i)}, v4, {S(S_X)}, s{sT0 if h == 0 else sT1} offen offset:{128*i}"))
    a.stamp(13)
    a(f"s_lshr_b32 s{sT0}, s{sHW}, 1\ns_min_u32 s{sT0}, s{sT0}, 55\ns_cmp_ge_u32 s{sT0}, 28\ns_cselect_b32 s{S_W1}, s{P_W3}, s{P_W1}\ns_cselect_b32 s{S_W1+1}, s{P_W3+1}, s{P_W1+1}")
    a(f"s_cselect_b32 s{sT1}, 28, 0\ns_mov_b32 s{sRB}, s{sT0}\ns_sub_u32 s{sT0}, s{sT0}, s{sT1}\ns_lshl_b32 s{sT0}, s{sT0}, 7")
    a(f"s_and_b32 s{S_W1+1}, s{S_W1+1}, 0xffff\ns_mov_b32 s{S_W1+2}, {512*3584}\ns_mov_b32 s{S_W1+3}, 0x00020000")
    a(f"s_mul_i32 s{sT1}, s{sWC}, {256*3584}\ns_add_u32 s{sWOFF}, s{sT0}, s{sT1}")
    ct = []
    for i in range(32):
        if i: a(f"s_add_u32 s{sWOFF}, s{sWOFF}, {8*3584}")
        ct.append(a.vm(f"buffer_load_dwordx4 {V(vC + 4*i)}, v5, {S(S_W1)}, s{sWOFF} offen"))
    code_prefetch(a, 240)
    a.srd(S_K, P_K, 2048 * 1024); a.srd(S_V, P_V, 2048 * 1024); a.srd(S_SH, P_SH, 4096)
    a(f"s_and_b32 s{sT0}, s{sHW}, 7\ns_lshl_b32 s{sT0}, s{sT0}, 7\ns_lshr_b32 s{sT1}, s{sHW}, 3\ns_lshl_b32 s{sT1}, s{sT1}, 17\ns_add_u32 s{sT0}, s{sT0}, s{sT1}")
    a(f"v_add_u32 v6, s{sT0}, v6\nv_subrev_u32 v7, 3072, v6\ns_mul_i32 s{sXI}, s{sW}, 36864")
    kt = {}
    for i in range(-3, 16):
        a(f"s_add_u32 m0, s{sXI}, {(i+3)*1024}")
        if i < 0:
            a(f"v_add_u32 v10, {(i+3)*1024}, v7")
            kt[('k', i)] = a.vm(f"buffer_load_dwordx4 v10, {S(S_K)}, 0 offen lds")
        else:
            a(f"s_mov_b32 s{sT0}, {i*1024}")
            kt[('k', i)] = a.vm(f"buffer_load_dwordx4 v6, {S(S_K)}, s{sT0} offen lds")
            a(f"s_add_u32 m0, s{sXI}, {(19+i)*1024}\ns_nop 0")
            kt[('v', i)] = a.vm(f"buffer_load_dwordx4 v6, {S(S_V)}, s{sT0} offen lds")
        if i == 2:
            a.stamp(14)
            common_srds(a)
            a("v_mov_b32 v8, 0x3f803f80")
            for h in range(2):
                b = vS + 32 * h
                a.wvm(stt[8 * h + 7])
                for j in range(4): a(f"v_mov_b32 v{12+j}, 0")
                for j in range(32): a(f"v_dot2c_f32_bf16 v{12 + (j & 3)}, v{b+j}, v8")
                a("s_nop 2\nv_add_f32 v12, v12, v13\nv_add_f32 v14, v14, v15\nv_add_f32 v12, v12, v14")
                def red(r):
                    a(f"s_nop 1\nv_add_f32_dpp v{r}, v{r}, v{r} quad_perm:[1,0,3,2] row_mask:0xf bank_mask:0xf")
                    a(f"s_nop 1\nv_add_f32_dpp v{r}, v{r}, v{r} quad_perm:[2,3,0,1] row_mask:0xf bank_mask:0xf")
                    a(f"s_nop 1\nv_add_f32_dpp v{r}, v{r}, v{r} row_half_mirror row_mask:0xf bank_mask:0xf")
                red(12)
                a("v_mul_f32 v12, 0xbb000000, v12")
                for j in range(4): a(f"v_mov_b32 v{16+j}, 0")
                for j in range(32):
                    t = 24 + 2 * (j & 1)
                    a(f"v_lshlrev_b32 v{t}, 16, v{b+j}\nv_and_b32 v{t+1}, 0xffff0000, v{b+j}")
                    a(f"v_pk_add_f32 {V(t,2)}, {V(t,2)}, {V(12,2)} op_sel_hi:[1,0]")
                    a(f"v_pk_fma_f32 {V(16+2*(j&1),2)}, {V(t,2)}, {V(t,2)}, {V(16+2*(j&1),2)}")
                a("v_add_f32 v16, v16, v17\nv_add_f32 v18, v18, v19\nv_add_f32 v16, v16, v18")
                red(16)
                a("v_mul_f32 v16, 0x3b000000, v16")
                a("v_cvt_pk_bf16_f32 v16, v16, v12\nv_and_b32 v12, 0xffff0000, v16\nv_lshlrev_b32 v16, 16, v16")
                a("v_add_f32 v16, 0x3727c5ac, v16\nv_cvt_pk_bf16_f32 v16, v16, v16\nv_lshlrev_b32 v16, 16, v16")
                a("v_sqrt_f32 v16, v16\ns_nop 0\nv_cvt_pk_bf16_f32 v16, v16, v16\nv_lshlrev_b32 v16, 16, v16")
                a("v_rcp_f32 v15, v16\nv_mul_f32 v14, v16, v16\nv_mul_f32 v13, 0xbfb8aa3b, v15")
                a(f"v_lshlrev_b32 v9, 4, v2\ns_lshl_b32 s{sT0}, s{sHW}, 8\ns_add_u32 s{sT0}, s{sT0}, {WS_STATS + 128*h}")
                a(f"s_mov_b32 exec_lo, 0x01010101\ns_mov_b32 exec_hi, 0x01010101")
                a.vm(f"buffer_store_dwordx4 v[12:15], v9, {S(S_WS)}, s{sT0} offen sc1")
                a("s_mov_b64 exec, -1\ns_nop 1")
            a.stamp(15)
            ntk = a.get_nonce_issue(10)
    a.stamp(1)
    wl = []
    for j in range(4):
        if j == 0: a(f"s_and_b32 s{sT0}, s{sHW}, 7\ns_lshl_b32 s{sT0}, s{sT0}, 9\nv_lshlrev_b32 v9, 2, v3")
        wl.append(a.vm(f"buffer_load_dwordx4 {V(vS + 4*j)}, v9, {S(S_SH)}, s{sT0} offen offset:{16*j}"))
    for j in range(8): a(f"v_mov_b32 v{12+j}, 0")
    LCS = 147456
    a(f"v_lshlrev_b32 v30, 3, v{vL}")
    a(f"v_add_u32 v30, {LCS}, v30\nds_write_b64 v30, v[12:13]")
    for i in range(32):
        a.wvm(ct[i])
        for j in range(4):
            t = 24 + 2 * (j & 1)
            a(f"v_lshlrev_b32 v{t}, 16, v{vC+4*i+j}\nv_and_b32 v{t+1}, 0xffff0000, v{vC+4*i+j}")
            a(f"v_pk_add_f32 {V(12+2*j,2)}, {V(12+2*j,2)}, {V(t,2)}")
    a(f"s_lshl_b32 s{sT0}, s{sWR}, 8\ns_add_u32 s{sT0}, s{sT0}, {LCS}\nv_lshlrev_b32 v30, 1, v3\nv_add_u32 v30, s{sT0}, v30")
    a("s_waitcnt lgkmcnt(0)\ns_barrier")
    for j in range(8): a(f"ds_add_f32 v30, v{12+j} offset:{4*j}")
    a("s_waitcnt lgkmcnt(0)\ns_barrier")
    a(f"v_lshlrev_b32 v30, 2, v{vL}\nv_add_u32 v29, s{sT0}, v30\nds_read_b32 v12, v29")
    a(f"s_lshl_b32 s{sT0}, s{sRB}, 8\ns_add_u32 s{sT0}, s{sT0}, {WS_CS}")
    a.get_nonce_check(ntk, 10)
    Lc = a.label("CS")
    a(f"s_waitcnt lgkmcnt(0)\ns_cmp_ge_u32 s{sHW}, 112\ns_cbranch_scc1 {Lc}\ns_cmp_lg_u32 s{sWC}, 0\ns_cbranch_scc1 {Lc}")
    a(f"buffer_store_dword v12, v30, {S(S_WS)}, s{sT0} offen sc1\n{Lc}:")
    a("s_waitcnt vmcnt(0)")
    a(f"s_lshl_b32 s{sT0}, s{sHW}, 2\ns_add_u32 s{sT0}, s{sT0}, {WS_FA}")
    a.flag_store(f"s{sT0}", 12)
    a.stamp(2)
    vWt = 64
    for c in range(8):
        for j in range(4):
            src = vS + 2 * c + (j >> 1); dst = vWt + 8 * j + c
            a(f"v_lshlrev_b32 v{dst}, 16, v{src}" if j % 2 == 0 else f"v_and_b32 v{dst}, 0xffff0000, v{src}")
    a(f"v_add_u32 v30, s{sXI}, v{vLIN}")
    vK = 96
    vR = 128
    vO = 32
    vRes = 160
    rk = {}; rv = {}
    raw = 128
    order = [('k', -3), ('k', -2), ('k', -1)]
    for i in range(16): order += [('k', i), ('v', i)]
    tok = {}
    def issue(n):
        if n < len(order):
            kind, i = order[n]
            off = (i + 3) * 1024 if kind == 'k' else (19 + i) * 1024
            tok[n] = a.ds(f"ds_read_b128 {V(raw + 4*(n % 8))}, v30 offset:{off}")
    for n in range(6): issue(n)
    vT = 224
    for n, (kind, i) in enumerate(order):
        a.wds(tok[n])
        r = raw + 4 * (n % 8)
        if kind == 'k':
            d = vK + 8 * (i & 3)
            for j in range(4): a(f"v_lshlrev_b32 v{d+2*j}, 16, v{r+j}\nv_and_b32 v{d+2*j+1}, 0xffff0000, v{r+j}")
        else:
            tv = vT + 16; o = vT + 8 * (i & 1)
            for j in range(4): a(f"v_lshlrev_b32 v{tv+2*j}, 16, v{r+j}\nv_and_b32 v{tv+2*j+1}, 0xffff0000, v{r+j}")
            for p in range(4): a(f"v_pk_mul_f32 {V(o+2*p,2)}, {V(vK + 8*((i-3) & 3) + 2*p,2)}, {V(vWt+24+2*p,2)}")
            for tap in (2, 1, 0):
                for p in range(4): a(f"v_pk_fma_f32 {V(o+2*p,2)}, {V(vK + 8*((i-tap) & 3) + 2*p,2)}, {V(vWt+8*tap+2*p,2)}, {V(o+2*p,2)}")
            for p in range(4): a(f"v_pk_mul_f32 {V(o+2*p,2)}, {V(o+2*p,2)}, {V(tv+2*p,2)}")
            if i & 1:
                for c in range(8): a(f"v_cvt_pk_bf16_f32 v{vRes + 8*c + (15-i)//2}, v{vT+8+c}, v{vT+c}")
        issue(n + 6)
    a(f"v_and_b32 v9, 7, v{vL}\nv_sub_u32 v10, 7, v2\nv_lshlrev_b32 v10, 1, v10\nv_xor_b32 v10, v10, v9\nv_lshlrev_b32 v9, 11, v9\nv_add_u32 v9, s{sXI}, v9")
    a(f"v_lshl_add_u32 v11, v10, 4, v9\nv_xor_b32 v10, 1, v10\nv_lshl_add_u32 v10, v10, 4, v9")
    for c in range(8):
        a(f"ds_write_b128 v11, {V(vRes+8*c)} offset:{256*c}\nds_write_b128 v10, {V(vRes+8*c+4)} offset:{256*c}")
    a(f"v_lshrrev_b32 v9, 4, v{vL}\nv_and_b32 v10, 15, v{vL}\nv_lshlrev_b32 v11, 8, v9\nv_add_u32 v11, s{sXI}, v11")
    a(f"v_lshlrev_b32 v12, 12, v9\nv_lshl_or_b32 v12, v10, 4, v12")
    a(f"s_and_b32 s{sT0}, s{sHW}, 7\ns_lshl_b32 s{sT0}, s{sT0}, 18\ns_lshr_b32 s{sT1}, s{sHW}, 3\ns_sub_u32 s{sT1}, 15, s{sT1}\ns_lshl_b32 s{sT1}, s{sT1}, 8\ns_add_u32 s{sT0}, s{sT0}, s{sT1}\ns_add_u32 s{sT0}, s{sT0}, {WS_KVR}")
    a("s_waitcnt lgkmcnt(0)")
    rt = []
    for i in range(16):
        a(f"v_xor_b32 v13, {i >> 1}, v10\nv_lshl_add_u32 v13, v13, 4, v11")
        rt.append(a.ds(f"ds_read_b128 {V(32 + 4*i)}, v13 offset:{1024*i}"))
    for i in range(16):
        a.wds(rt[i])
        if i: a(f"s_add_u32 s{sT0}, s{sT0}, 16384")
        a.vm(f"buffer_store_dwordx4 {V(32 + 4*i)}, v12, {S(S_WS)}, s{sT0} offen sc1")
    stash_setup(a)
    a("s_waitcnt vmcnt(0)")
    a(f"s_lshl_b32 s{sT0}, s{sHW}, 2\ns_add_u32 s{sT0}, s{sT0}, {WS_FB}")
    a.flag_store(f"s{sT0}", 12)
    a("s_barrier")
    a.stamp(3)


def build(stamps=False, cfg=None):
    cfg = cfg or {}
    cfg.setdefault('stash_g1', {})
    cfg.setdefault('y_pub', 30); cfg.setdefault('fy_issue', 70); cfg.setdefault('fy_check', 130); cfg.setdefault('y_pass', 2)
    cfg.setdefault('LA', 20); cfg.setdefault('LA0', 14)
    a = G(stamps)
    if stamps:
        a("v_mov_b32 v31, 0")
        a.stamp(0)
    prologue_common(a)
    a("s_cmp_lt_u32 s2, 32\ns_cbranch_scc1 L_HELPER")
    st, sd, sr = gemm1(a, cfg)
    P, cst = conv_stage_parts(a, 48)
    def rounds(kaps):
        fs = []; tk = {}
        for k in kaps:
            f, t = stash_dma(a, k); fs += f; tk[k] = t
        return fs, tk
    def reads(kaps, tk):
        out = []; fs = []
        for k in kaps: fs += stash_reads(a, k, tk[k], out)
        fs.append(lambda: a("s_waitcnt lgkmcnt(0)"))
        return fs
    for f in P['pre'] + P['gload'] + P['even']: f()
    fb = fab_load(a, WS_FB, 24)
    d0, t0 = rounds([0, 1, 2])
    for f in d0: f()
    side = {}
    side[1] = P['zeros']
    side[3] = P['odd'][:4]; side[4] = P['odd'][4:] + P['fix']
    side[5] = [lambda: a.check_flags(fb[0], 24, 2, fb[1])] + P['kv']
    d1, t1 = rounds([3, 4, 5])
    side[6] = reads([0, 1, 2], t0) + d1
    d2, t2 = rounds([6, 7, 8])
    side[13] = reads([3, 4, 5], t1) + d2
    htok = gemm1_epilogue(a, cfg, st, side)
    a.stamp(4)
    a.wvm(cst['k'][-1])
    save = (a.nvm, a.nds)
    a("L_CONV:")
    a("s_waitcnt lgkmcnt(0)\ns_barrier")
    a.stamp(5)
    hooks = {}
    d3, t3 = rounds([9, 10, 11]); d4, t4 = rounds([12, 13])
    for i, f in enumerate(reads([6, 7, 8], t2) + d3): addf(hooks, 18 + i // 2, f)
    for i, f in enumerate(reads([9, 10, 11], t3) + d4): addf(hooks, 36 + 36 + 18 + i // 2, f)
    def h_publish():
        Lk = a.label("HP")
        a.wvm(htok[-1])
        a(f"s_cmp_eq_u32 s{sFH}, 0\ns_cbranch_scc1 {Lk}")
        a.flag_store(f"s{sFH}", 28)
        a.nvm -= 1
        a(f"{Lk}:")
    addf(hooks, cfg.get('h_pub', 50), h_publish)
    g2 = {}
    addf(hooks, cfg.get('fh_issue', 125), lambda: fh_issue(a, g2))
    ht = {}
    def after():
        for f in reads([12, 13], t4): f()
        a.check_flags(g2['fh'], 28, 1, g2['fh_txt'])
        a.stamp(7)
        h_setup(a)
        for i in range(cfg['LA0']): h_load(a, ht, i // 14, i % 14)()
    ytok = conv(a, cfg, hooks, after)
    gemm2(a, cfg, ytok, ht)
    if stamps:
        a.stamp(10)
        a("s_waitcnt vmcnt(0)")
        a.stamp(11)
        a(f"s_lshl_b32 s{sT0}, s2, 2\ns_add_u32 s{sT0}, s{sT0}, s{sW}\ns_lshl_b32 s{sT0}, s{sT0}, 8\ns_add_u32 s{sT0}, s{sT0}, {WS_STAMP}\nv_lshlrev_b32 v2, 2, v{vL}")
        a(f"buffer_store_dword v31, v2, {S(S_WS)}, s{sT0} offen")
    a("L_END:\ns_endpgm")
    n_main = len(a.l)
    a("L_HELPER:")
    helper(a, cfg)
    a(f"s_mov_b32 s{sFH}, 0")
    P, cst = conv_stage_parts(a, 48)
    for f in P['pre'] + P['gload'] + P['even']: f()
    fa = fab_load(a, WS_FA, 24)
    d0, t0 = rounds([0, 1, 2])
    for f in d0: f()
    for f in P['zeros'] + P['odd'] + P['fix']: f()
    a.check_flags(fa[0], 24, 2, fa[1])
    fb = fab_load(a, WS_FB, 24)
    d1, t1 = rounds([3, 4, 5])
    for f in reads([0, 1, 2], t0) + d1: f()
    a.check_flags(fb[0], 24, 2, fb[1])
    for f in P['kv']: f()
    d2, t2 = rounds([6, 7, 8])
    for f in reads([3, 4, 5], t1) + d2: f()
    a("s_waitcnt vmcnt(0)")
    a.stamp(4)
    a("s_branch L_CONV")
    for b in a.slow: a(b)
    a("L_CODE_END:\ns_endpgm")
    hazard.check(a.l[:n_main]); hazard.check(a.l[n_main:])
    hdr = open("cdna_kernels/" + NAME + ".s.ref").read().split("; Override launch")[0] if __name__ == "__main__" else ""
    return module([dict(name=NAME + "_kernel", body=a.text(), grid=256, block=256, lds=163840, vgpr=512, sgpr=102, accum=256)], header="")

if __name__ == "__main__":
    out = sys.argv[1]
    stamps = "--stamps" in sys.argv
    open(out, "w").write(build(stamps))
```

```python
import sys
from asmlib import *
import hazard

WS_FA, WS_FB, WS_FH, WS_FY = 0x0, 0x200, 0x1000, 0x2000
WS_STAMP = 0x1000000
WS_STATS, WS_CS = 0x10000, 0x20000
WS_KVR, WS_YT, WS_H = 0x100000, 0x400000, 0x800000
P_Q, P_K, P_V, P_SH, P_SK, P_SD, P_W1, P_W3, P_W2, P_OUT, P_DBG, P_WS = 4, 6, 8, 10, 12, 14, 18, 20, 22, 24, 26, 28
S_X, S_W1, S_W3, S_W2, S_WS, S_SK, S_OUT, S_DBG, S_K, S_V, S_SH, S_CODE = 32, 36, 40, 44, 48, 52, 56, 60, 64, 68, 72, 76
sW, sWR, sWC, sRB, sCB, sKI, sWOFF, sXI, sXOFF, sNONCE, sTB, sDB = 80, 81, 82, 83, 84, 85, 86, 87, 88, 89, 90, 91
sT0, sT1, sT2, sLW, sSPIN, sD, sW2OFF, sSTG = 92, 93, 94, 95, 96, 97, 98, 99
sC0, sC1 = 100, 101
sCH = 30; sT3 = 31; sFH = 3
def S(i, n=4): return f"s[{i}:{i+n-1}]"
def V(i, n=4): return f"v[{i}:{i+n-1}]" if n > 1 else f"v{i}"
def A(i, n=4): return f"a[{i}:{i+n-1}]" if n > 1 else f"a{i}"
L_XR = 65536
L_STG = 114688
CP_STRIDE = 4352; CH_STRIDE = 39424; KV_OFF = 34816
BETA = [12, 0, 1, 4, 5, 8, 9, 12]
L_YT, L_YS = 32768, 40960
LOG2E = 1.4426950408889634

class G(Asm):
    def __init__(self, stamps=False):
        super().__init__()
        self.nvm = 0; self.nds = 0; self.stamps = stamps; self.nstamp = 0; self.slow = []
    def vm(self, t):
        self(t); self.nvm += 1; return self.nvm
    def ds(self, t):
        self(t); self.nds += 1; return self.nds
    def wvm(self, tok):
        n = self.nvm - tok
        if n < 63: self(f"s_waitcnt vmcnt({n})")
    def wds(self, tok):
        n = self.nds - tok
        self(f"s_waitcnt lgkmcnt({min(n, 15)})")
    def stamp(self, idx):
        if self.stamps:
            self("s_memtime s[16:17]\ns_waitcnt lgkmcnt(0)")
            self(f"v_writelane_b32 v31, s16, {idx}")
            self("s_memrealtime s[16:17]\ns_waitcnt lgkmcnt(0)")
            self(f"v_writelane_b32 v31, s16, {32+idx}")
    def srd(self, d, base, nbytes, add=None):
        if add is None:
            self(f"s_mov_b32 s{d}, s{base}\ns_and_b32 s{d+1}, s{base+1}, 0xffff")
        else:
            self(f"s_add_u32 s{d}, s{base}, {add}\ns_addc_u32 s{d+1}, s{base+1}, 0\ns_and_b32 s{d+1}, s{d+1}, 0xffff")
        self(f"s_mov_b32 s{d+2}, {nbytes}\ns_mov_b32 s{d+3}, 0x00020000")
    def check_flags(self, tok, vt, n, reload):
        self.wvm(tok)
        Ls = self.label("SLOW"); Lb = self.label("BACK")
        self(f"{Lb}:")
        self(f"v_cmp_ne_u32 vcc, s{sNONCE}, v{vt}")
        for i in range(1, n):
            self(f"v_cmp_ne_u32 s[{sT0}:{sT0+1}], s{sNONCE}, v{vt+i}\ns_nop 0\ns_or_b64 vcc, vcc, s[{sT0}:{sT0+1}]")
        self(f"s_nop 1\ns_cbranch_vccnz {Ls}")
        Lo = self.label("OK")
        self(f"{Lo}:")
        self.slow.append(f"{Ls}:\ns_cmp_eq_u32 s{sSPIN}, 0\ns_cbranch_scc1 {Lo}\ns_sub_u32 s{sSPIN}, s{sSPIN}, 1\ns_sleep 2\n{reload}\ns_waitcnt vmcnt(0)\ns_branch {Lb}")
    def flag_store(self, soff_text_or_reg, vtmp):
        self(f"v_mov_b32 v{vtmp}, s{sNONCE}\nv_mov_b32 v{vtmp+1}, 0\ns_mov_b64 exec, 1")
        t = self.vm(f"buffer_store_dword v{vtmp}, v{vtmp+1}, {S(S_WS)}, {soff_text_or_reg} offen sc1")
        self("s_mov_b64 exec, -1")
        return t
    def get_nonce_issue(self, vt):
        self(f"v_mov_b32 v{vt+1}, 0")
        return self.vm(f"buffer_load_dword v{vt}, v{vt+1}, {S(S_DBG)}, 0 offen sc1")
    def get_nonce_check(self, tok, vt):
        self.wvm(tok)
        Ls = self.label("SLOWN"); Lb = self.label("BACKN"); Lo = self.label("OKN")
        self(f"{Lb}:\nv_readfirstlane_b32 s{sNONCE}, v{vt}\ns_nop 1\ns_cmp_eq_u32 s{sNONCE}, 0\ns_cbranch_scc1 {Ls}\n{Lo}:")
        self.slow.append(f"{Ls}:\ns_cmp_eq_u32 s{sSPIN}, 0\ns_cbranch_scc1 {Lo}\ns_sub_u32 s{sSPIN}, s{sSPIN}, 1\ns_sleep 2\n"
                         f"buffer_load_dword v{vt}, v{vt+1}, {S(S_DBG)}, 0 offen sc1\ns_waitcnt vmcnt(0)\ns_branch {Lb}")

def run_stream(a, main, fill):
    for i, m in enumerate(main):
        a(m)
        for f in fill.get(i, []): f()
def addf(fill, gap, *fs):
    fill.setdefault(gap, []).extend(fs)

vL = 1; vWT = 2; vXR = 6; vWD = 8; vXD = 12; vST = 16; vSD = 20; vLIN = 21
vAF = 32; vCS = 96; vACC = 128
aXF = 224

def prologue_common(a):
    a("s_cmp_ge_u32 s2, 256\ns_cbranch_scc1 L_END")
    a("s_load_dwordx16 s[4:19], s[0:1], 0\ns_load_dwordx8 s[20:27], s[0:1], 64\ns_load_dwordx2 s[28:29], s[0:1], 96")
    a(f"v_lshrrev_b32 v22, 6, v0\nv_and_b32 v{vL}, 63, v0")
    a(f"v_readfirstlane_b32 s{sW}, v22")
    a(f"v_lshlrev_b32 v{vLIN}, 4, v{vL}")
    a(f"s_mov_b32 s{sSPIN}, 20000")
    a(f"s_lshr_b32 s{sWR}, s{sW}, 1\ns_and_b32 s{sWC}, s{sW}, 1\ns_lshl_b32 s{sLW}, s{sW}, 12")
    a(f"s_and_b32 s{sT0}, s2, 7\ns_lshr_b32 s{sT1}, s2, 3\ns_and_b32 s{sDB}, s{sT1}, 7\ns_lshr_b32 s{sT1}, s{sT1}, 3")
    a(f"s_lshl_b32 s{sTB}, s{sT0}, 2\ns_add_u32 s{sTB}, s{sTB}, s{sT1}")
    a(f"s_lshl_b32 s{sCH}, s2, 1\ns_add_u32 s{sCH}, s{sCH}, s{sWR}")

def common_srds(a):
    a.srd(S_WS, P_WS, 0x10000000)
    a.srd(S_DBG, P_DBG, 256)
    a.srd(S_SK, P_SK, 512 * 4096)
    a(f"s_lshl_b32 s{sT0}, s{sDB}, 7")
    a.srd(S_W2, P_W2, 1792 * 1024 - 896, add=f"s{sT0}")
    a.srd(S_OUT, P_OUT, 2048 * 1024)
    a(f"s_mov_b32 s{sC0}, 0xbfb8aa3b\ns_mov_b32 s{sC1}, 0xbfb8aa3b")
    a(f"s_lshl_b32 s{sT0}, s2, 2\ns_load_dword s{sD}, s[{P_SD}:{P_SD+1}], s{sT0}")

def code_prefetch(a, vd):
    a(f"s_getpc_b64 s[{S_CODE}:{S_CODE+1}]")
    Lp = a.label("PC"); a(f"{Lp}:")
    a(f"s_sub_u32 s{S_CODE}, s{S_CODE}, {Lp}-{NAME}_kernel\ns_subb_u32 s{S_CODE+1}, s{S_CODE+1}, 0\ns_and_b32 s{S_CODE+1}, s{S_CODE+1}, 0xffff")
    a(f"s_mov_b32 s{S_CODE+2}, L_CODE_END-{NAME}_kernel\ns_mov_b32 s{S_CODE+3}, 0x00020000")
    a(f"s_lshr_b32 s{sT0}, s2, 3\ns_lshl_b32 s{sT0}, s{sT0}, 2\ns_add_u32 s{sT0}, s{sT0}, s{sW}\ns_and_b32 s{sT0}, s{sT0}, 63\ns_lshl_b32 s{sT0}, s{sT0}, 10")
    a.vm(f"buffer_load_dwordx4 {V(vd)}, v{vLIN}, {S(S_CODE)}, s{sT0} offen")

def stash_setup(a):
    a(f"v_lshrrev_b32 v22, 3, v{vL}\nv_bfe_u32 v23, v{vL}, 1, 2\nv_bfe_u32 v28, v{vL}, 4, 2\nv_xor_b32 v23, v23, v28")
    a(f"v_lshlrev_b32 v22, 10, v22\nv_lshl_or_b32 v22, v23, 5, v22\nv_and_b32 v23, 1, v{vL}\nv_lshl_or_b32 v{vSD}, v23, 4, v22")
    a(f"s_mul_i32 s{sSTG}, s{sW}, 12288\ns_add_u32 s{sSTG}, s{sSTG}, {L_STG}")
    a(f"v_bfe_u32 v22, v{vL}, 2, 3")
    a(f"v_lshrrev_b32 v23, 5, v{vL}\nv_lshlrev_b32 v23, 10, v23\nv_lshl_or_b32 v23, v22, 7, v23")
    a(f"v_and_b32 v28, 3, v{vL}\nv_lshl_or_b32 v23, v28, 3, v23\nv_add_u32 v23, s{sSTG}, v23")
    a("v_lshrrev_b32 v22, 1, v22")
    for mt in range(4):
        a(f"v_xor_b32 v28, {mt}, v22\nv_lshl_add_u32 v{vST+mt}, v28, 5, v23")
    a(f"s_mul_i32 s{sW2OFF}, s{sW}, {14*32*1024}")

def stash_dma(a, kap):
    slot = kap % 3
    toks = []
    def one(i):
        def f():
            a(f"s_add_u32 m0, s{sSTG}, {slot*4096 + i*1024}\ns_add_u32 s{sT2}, s{sW2OFF}, {kap*32768 + i*8192}")
            toks.append(a.vm(f"buffer_load_dwordx4 v{vSD}, {S(S_W2)}, s{sT2} offen lds"))
        return f
    return [one(i) for i in range(4)], toks
def stash_reads(a, kap, toks, out):
    slot = kap % 3
    fs = []
    def first(): a.wvm(toks[-1])
    fs.append(first)
    for mt in range(4):
        for h in range(2):
            def f(mt=mt, h=h):
                out.append(a.ds(f"ds_read_b64_tr_b16 {A(16*kap+4*mt+2*h, 2)}, v{vST+mt} offset:{slot*4096 + h*2048}"))
            fs.append(f)
    return fs

vCA, vCB = 22, 23
def conv_stage_parts(a, vg):
    P = {}
    st = {}
    def pre():
        a(f"s_mul_i32 s{sT3}, s{sWR}, {CH_STRIDE}\ns_lshl_b32 s{sXOFF}, s{sCH}, 12\ns_lshl_b32 s{sT0}, s{sWC}, 3\ns_add_u32 s{sXOFF}, s{sXOFF}, s{sT0}")
        def cb(s_): return s_ * CP_STRIDE + 16 * BETA[s_] + 32
        for reg, j in ((sWOFF, 0), (sT0, 1), (sKI, 2), (sT1, 3)):
            a(f"s_mul_i32 s{reg}, s{sWC}, {cb(4+j) - cb(j)}\ns_add_u32 s{reg}, s{reg}, {cb(j)}\ns_add_u32 s{reg}, s{reg}, s{sT3}")
        a(f"v_add_u32 v28, s{sT0}, v{vLIN}\nv_add_u32 v29, s{sT1}, v{vLIN}")
        a(f"s_add_u32 s{sXI}, s{sXOFF}, 4")
    P['pre'] = [pre]
    gl = []; st['g'] = []
    for i in range(4):
        def f(i=i):
            a.vm(f"buffer_load_dwordx4 {V(vg+6*i)}, v{vLIN}, {S(S_SK)}, s{sXOFF} offen offset:{1024*i}")
        def f2(i=i):
            st['g'].append(a.vm(f"buffer_load_dwordx2 {V(vg+6*i+4, 2)}, v{vLIN}, {S(S_SK)}, s{sXOFF} offen offset:{1024*i+16}"))
        gl += [f, f2]
    P['gload'] = gl
    ev = []; st['e'] = []
    for c in range(2):
        for i in range(4):
            def f(c=c, i=i):
                if i == 0: a(f"s_mov_b32 m0, s{sWOFF if c == 0 else sKI}\ns_nop 0")
                st['e'].append(a.vm(f"buffer_load_dwordx4 v{vLIN}, {S(S_SK)}, s{sXOFF if c == 0 else sXI} offen offset:{1024*i} lds"))
            ev.append(f)
    P['even'] = ev
    od = []
    for i in range(4):
        for c in range(2):
            def f(i=i, c=c):
                if c == 0: a.wvm(st['g'][i])
                t = vg + 24 + 4 * c
                for j in range(4):
                    a(f"v_alignbit_b32 v{t+j}, v{vg+6*i+j+c+1}, v{vg+6*i+j+c}, 16")
                a.ds(f"ds_write_b128 v{28+c}, {V(t)} offset:{1024*i}")
            od.append(f)
    P['odd'] = od
    def zeros():
        t = vg + 24
        a(f"v_bfe_u32 v{t+4}, v{vL}, 1, 3\nv_add_u32 v{t+5}, 7, v{t+4}\nv_and_b32 v{t+5}, 7, v{t+5}")
        a(f"v_lshrrev_b32 v{t+6}, 1, v{t+5}\nv_and_b32 v{t+5}, 1, v{t+5}\nv_lshl_add_u32 v{t+5}, v{t+6}, 2, v{t+5}\nv_min_u32 v{t+5}, 12, v{t+5}")
        a(f"v_and_b32 v{t+6}, 1, v{vL}\nv_add_u32 v{t+5}, v{t+5}, v{t+6}\nv_lshlrev_b32 v{t+5}, 4, v{t+5}")
        a(f"v_mul_u32_u24 v{t+4}, {CP_STRIDE}, v{t+4}\nv_add3_u32 v30, v{t+4}, v{t+5}, s{sT3}")
        for j in range(2): a(f"v_mov_b32 v{t+j}, 0")
        a(f"v_lshlrev_b32 v{t+4}, 3, v{vL}\nv_add_u32 v{t+4}, s{sT3}, v{t+4}")
        a.ds(f"ds_write_b64 v{t+4}, {V(t, 2)} offset:{KV_OFF+4096}")
    P['zeros'] = [zeros]
    def fix():
        t = vg + 24
        Lk = a.label("FIX")
        a.wvm(st['e'][0])
        a(f"s_cmp_lg_u32 s{sWC}, 0\ns_cbranch_scc1 {Lk}")
        for j in range(4): a(f"v_mov_b32 v{t+j}, 0")
        a(f"ds_write_b128 v30, {V(t)}")
        a(f"v_and_b32 v{t+4}, 14, v{vL}\nv_add_u32 v{t+4}, s{sT3}, v{t+4}")
        a(f"ds_read_b128 {V(t)}, v{t+4} offset:{16*BETA[0]+16}")
        a(f"v_or_b32 v{t+5}, 1, v{vL}\nv_sub_u32 v{t+5}, v{t+5}, v{vL}\nv_lshl_add_u32 v30, v{t+5}, 4, v30")
        a("s_waitcnt lgkmcnt(0)")
        a(f"ds_write_b128 v30, {V(t)}")
        a(f"{Lk}:")
    P['fix'] = [fix]
    kv = []; st['k'] = []
    for i in range(2):
        def f(i=i):
            if i == 0:
                a(f"s_lshl_b32 s{sT0}, s{sWC}, 11\ns_add_u32 s{sT1}, s{sT3}, s{sT0}\ns_add_u32 m0, s{sT1}, {KV_OFF}")
                a(f"s_lshl_b32 s{sT1}, s{sCH}, 12\ns_add_u32 s{sT1}, s{sT1}, s{sT0}\ns_add_u32 s{sT1}, s{sT1}, {WS_KVR}")
            st['k'].append(a.vm(f"buffer_load_dwordx4 v{vLIN}, {S(S_WS)}, s{sT1} offen offset:{1024*i} sc1 lds"))
        kv.append(f)
    P['kv'] = kv
    return P, st

def fab_load(a, which, vt):
    txt = f"buffer_load_dwordx2 {V(vt, 2)}, v{vt+2}, {S(S_WS)}, 0 offen offset:{which} sc1"
    a(f"v_lshlrev_b32 v{vt+2}, 3, v{vL}")
    return a.vm(txt), txt

def gemm1(a, cfg):
    a(f"s_sub_u32 s{sT0}, s2, 32\ns_and_b32 s{sT1}, s{sT0}, 7\ns_lshr_b32 s{sT0}, s{sT0}, 3")
    a(f"s_mul_i32 s{sT2}, s{sT0}, 37\ns_lshr_b32 s{sT2}, s{sT2}, 8")
    a(f"s_lshr_b32 s{sRB}, s{sT1}, 1\ns_lshl_b32 s{sRB}, s{sRB}, 2\ns_add_u32 s{sRB}, s{sRB}, s{sT2}")
    a(f"s_mul_i32 s{sT2}, s{sT2}, 7\ns_sub_u32 s{sT0}, s{sT0}, s{sT2}")
    a(f"s_and_b32 s{sCB}, s{sT1}, 1\ns_mul_i32 s{sCB}, s{sCB}, 7\ns_add_u32 s{sCB}, s{sCB}, s{sT0}")
    a(f"s_add_u32 s{sXI}, s{sRB}, s{sCB}\ns_and_b32 s{sXI}, s{sXI}, 7\ns_lshl_b32 s{sKI}, s{sXI}, 1")
    a(f"v_lshrrev_b32 v22, 3, v{vL}\ns_lshl_b32 s{sT0}, s{sW}, 15\nv_lshlrev_b32 v22, 10, v22\nv_add_u32 v22, s{sT0}, v22")
    a(f"v_and_b32 v23, 7, v{vL}\nv_lshrrev_b32 v28, 4, v{vL}\nv_xor_b32 v23, v23, v28\nv_lshl_or_b32 v{vXD}, v23, 4, v22")
    a(f"v_xor_b32 v{vXD+1}, 64, v{vXD}\nv_add_u32 v{vXD+1}, 7168, v{vXD+1}")
    a(f"s_lshl_b32 s{sT0}, s{sWC}, 2\nv_or_b32 v23, s{sT0}, v28\nv_bfe_u32 v22, v{vL}, 1, 3\nv_xor_b32 v22, v22, v23")
    a(f"s_lshl_b32 s{sT0}, s{sW}, 3\nv_add_u32 v23, s{sT0}, v28\nv_mul_u32_u24 v23, 3584, v23\nv_lshl_add_u32 v23, v22, 5, v23")
    a(f"v_and_b32 v22, 1, v{vL}\nv_lshl_add_u32 v{vWD}, v22, 4, v23\nv_add_u32 v{vWD+1}, {4*3584-1024}, v{vWD}")
    a("s_waitcnt lgkmcnt(0)")
    a.stamp(12)
    a(f"s_lshl_b32 s{sT0}, s{sRB}, 17")
    a.srd(S_X, P_Q, 131072, add=f"s{sT0}")
    a(f"s_lshl_b32 s{sT0}, s{sCB}, 8")
    a.srd(S_W1, P_W1, 511 * 3584 + 256, add=f"s{sT0}")
    a.srd(S_W3, P_W3, 511 * 3584 + 256, add=f"s{sT0}")
    wtok = {}; xtok = {}
    def w_dma(s):
        def f0():
            if s > 0: a(f"s_add_u32 s{sKI}, s{sKI}, 1\ns_and_b32 s{sKI}, s{sKI}, 15")
            a(f"s_mul_i32 s{sWOFF}, s{sKI}, 114688\ns_add_u32 m0, s{sLW}, {(s & 3) * 16384}\ns_nop 0")
            a.vm(f"buffer_load_dwordx4 v{vWD}, {S(S_W1)}, s{sWOFF} offen lds")
        def f1(): a.vm(f"buffer_load_dwordx4 v{vWD+1}, {S(S_W1)}, s{sWOFF} offen offset:1024 lds")
        def f2():
            a(f"s_add_u32 m0, s{sLW}, {(s & 3) * 16384 + 2048}\ns_nop 0")
            a.vm(f"buffer_load_dwordx4 v{vWD}, {S(S_W3)}, s{sWOFF} offen lds")
        def f3(): wtok[s] = a.vm(f"buffer_load_dwordx4 v{vWD+1}, {S(S_W3)}, s{sWOFF} offen offset:1024 lds")
        return [f0, f1, f2, f3]
    def x_dma(St, half):
        def f0():
            if half == 0:
                if St > 0: a(f"s_add_u32 s{sXI}, s{sXI}, 1\ns_and_b32 s{sXI}, s{sXI}, 7")
                a(f"s_lshl_b32 s{sXOFF}, s{sXI}, 7")
            else:
                a(f"s_add_u32 s{sXOFF}, s{sXOFF}, 16384")
            a(f"s_add_u32 m0, s{sLW}, {L_XR + (St % 3) * 16384 + half * 2048}\ns_nop 0")
            a.vm(f"buffer_load_dwordx4 v{vXD}, {S(S_X)}, s{sXOFF} offen lds")
        def f1(): xtok[(St, half)] = a.vm(f"buffer_load_dwordx4 v{vXD+1}, {S(S_X)}, s{sXOFF} offen offset:1024 lds")
        return [f0, f1]
    for f in x_dma(0, 0) + x_dma(0, 1) + w_dma(0) + w_dma(1): f()
    a.stamp(13)
    code_prefetch(a, 24)
    for f in x_dma(1, 0) + x_dma(1, 1) + w_dma(2) + w_dma(3) + x_dma(2, 0) + x_dma(2, 1): f()
    a.stamp(14)
    common_srds(a)
    a(f"v_lshrrev_b32 v28, 4, v{vL}\nv_bfe_u32 v22, v{vL}, 2, 2\nv_and_b32 v23, 1, v28\nv_lshl_or_b32 v23, v23, 2, v22")
    a(f"v_lshlrev_b32 v29, 12, v28\nv_lshl_or_b32 v29, v22, 8, v29\nv_and_b32 v22, 3, v{vL}\nv_lshl_or_b32 v29, v22, 3, v29")
    a(f"s_lshl_b32 s{sT0}, s{sWC}, 2\nv_xor_b32 v23, s{sT0}, v23")
    for m in range(4):
        a(f"v_xor_b32 v22, {m}, v23\nv_lshl_add_u32 v{vWT+m}, v22, 5, v29")
    a(f"v_and_b32 v22, 15, v{vL}\nv_lshrrev_b32 v23, 1, v22\nv_xor_b32 v23, v23, v28\ns_lshl_b32 s{sT0}, s{sWR}, 13\ns_add_u32 s{sT0}, s{sT0}, {L_XR}")
    a(f"v_lshlrev_b32 v22, 7, v22\nv_lshl_or_b32 v22, v23, 4, v22\nv_add_u32 v{vXR}, s{sT0}, v22\nv_xor_b32 v{vXR+1}, 64, v{vXR}")
    stash_setup(a)
    a("s_waitcnt lgkmcnt(0)")
    a.stamp(1)
    def reads(s):
        b = s & 1; fs = []
        for mt in range(8):
            for h in range(2):
                def f(mt=mt, h=h):
                    a.ds(f"ds_read_b64_tr_b16 {V(vAF + 32*b + 4*mt + 2*h, 2)}, v{vWT + (mt & 3)} offset:{(s & 3)*16384 + (mt >> 2)*2048 + h*1024}")
                fs.append(f)
        xs = []
        for nt in range(4):
            def f(nt=nt):
                a.ds(f"ds_read_b128 {A(aXF + 16*b + 4*nt)}, v{vXR + (s & 1)} offset:{((s >> 1) % 3)*16384 + nt*2048}")
            xs.append(f)
        return fs, xs
    def sync(s):
        def f():
            if s + 1 <= 15:
                a.wvm(max(wtok[s + 1], xtok[((s + 1) >> 1, 1)]))
            a("s_waitcnt lgkmcnt(0)\ns_barrier")
        return f
    a.wvm(max(wtok[0], xtok[(0, 1)])); a("s_barrier")
    a.stamp(2)
    fa_, fx_ = reads(0)
    for f in fa_ + fx_: f()
    sync(0)()
    main = []; fill = {}
    for s in range(16):
        b = s & 1
        for mt in range(8):
            for nt in range(4):
                acc = V(vACC + 16 * mt + 4 * nt)
                main.append(f"v_mfma_f32_16x16x32_bf16 {acc}, {V(vAF + 32*b + 4*mt)}, {A(aXF + 16*b + 4*nt)}, {'0' if s == 0 else acc}")
    SY = 28
    for s in range(16):
        base = 32 * s - (32 - SY) if s > 0 else 0
        if s + 1 <= 15:
            ra, rx = reads(s + 1)
            order = ra[:4] + rx[:1] + ra[4:8] + rx[1:2] + ra[8:12] + rx[2:3] + ra[12:] + rx[3:]
            for i, f in enumerate(order): addf(fill, base + i, f)
            addf(fill, 32 * s + SY - 1, sync(s + 1))
        d = []
        if s + 4 <= 15: d += w_dma(s + 4)
        if s % 2 == 1 and (s - 1) // 2 + 3 <= 7: d += x_dma((s - 1) // 2 + 3, 0)
        if s % 2 == 0 and s >= 2 and (s - 2) // 2 + 3 <= 7: d += x_dma((s - 2) // 2 + 3, 1)
        for i, f in enumerate(d): addf(fill, 32 * s + 15 + 2 * i, f)
    st = {}
    def nonce_issue(): st['n'] = a.get_nonce_issue(24)
    def nonce_check(): a.get_nonce_check(st['n'], 24)
    addf(fill, 32 * 6 + 2, nonce_issue); addf(fill, 32 * 9 + 26, nonce_check)
    def fa_issue(): st['fa'] = fab_load(a, WS_FA, 24)
    def fa_check(): a.check_flags(st['fa'][0], 24, 2, st['fa'][1])
    addf(fill, 32 * 11 + 26, fa_issue); addf(fill, 32 * 13 + 16, fa_check)
    def cs_loads(i):
        def f():
            if i == 0:
                a(f"v_lshrrev_b32 v24, 4, v{vL}\nv_lshlrev_b32 v24, 4, v24\ns_lshl_b32 s{sT0}, s{sCB}, 9\ns_lshl_b32 s{sT1}, s{sWC}, 8\ns_add_u32 s{sT0}, s{sT0}, s{sT1}\ns_add_u32 s{sT0}, s{sT0}, {WS_CS}")
                a(f"s_add_u32 s{sT1}, s{sT0}, 7168")
            st['cs'] = a.vm(f"buffer_load_dwordx4 {V(vCS + 4*i)}, v24, {S(S_WS)}, s{sT0 if i < 4 else sT1} offen offset:{64*(i & 3)} sc1")
        return f
    for i in range(8): addf(fill, 32 * 13 + 17 + i, cs_loads(i))
    def st_loads(i):
        def f():
            if i == 0:
                a(f"v_and_b32 v24, 15, v{vL}\nv_lshlrev_b32 v24, 4, v24\ns_lshl_b32 s{sT0}, s{sRB}, 11\ns_lshl_b32 s{sT1}, s{sWR}, 10\ns_add_u32 s{sT0}, s{sT0}, s{sT1}\ns_add_u32 s{sT0}, s{sT0}, {WS_STATS}")
            st['st'] = a.vm(f"buffer_load_dwordx4 {V(vAF + 4*i)}, v24, {S(S_WS)}, s{sT0} offen offset:{256*i} sc1")
        return f
    for i in range(4): addf(fill, 32 * 15 + i, st_loads(i))
    sd = {}; sr = []
    for kap, (gd, gr) in cfg['stash_g1'].items():
        fs, toks = stash_dma(a, kap); sd[kap] = toks
        for i, f in enumerate(fs): addf(fill, gd + i * cfg.get('stash_dstep', 1), f)
        if gr is not None:
            for i, f in enumerate(stash_reads(a, kap, toks, sr)): addf(fill, gr + i, f)
    run_stream(a, main, fill)
    a.stamp(3)
    return st, sd, sr

def gemm1_epilogue(a, cfg, st, side):
    a.wvm(max(st['cs'], st['st']))
    a(f"s_lshl_b32 s{sT0}, s{sRB}, 1\ns_add_u32 s{sT0}, s{sT0}, s{sWR}\ns_lshl_b32 s{sT0}, s{sT0}, 7\ns_lshl_b32 s{sT1}, s{sCB}, 3\ns_add_u32 s{sT0}, s{sT0}, s{sT1}")
    a(f"s_lshl_b32 s{sT1}, s{sWC}, 2\ns_add_u32 s{sT0}, s{sT0}, s{sT1}\ns_add_u32 s{sFH}, s{sT0}, {WS_FH}")
    a(f"s_lshl_b32 s{sT0}, s{sRB}, 3\ns_lshl_b32 s{sT1}, s{sWR}, 2\ns_add_u32 s{sT0}, s{sT0}, s{sT1}\ns_mul_i32 s{sT0}, s{sT0}, 56")
    a(f"s_lshl_b32 s{sT1}, s{sCB}, 2\ns_add_u32 s{sT0}, s{sT0}, s{sT1}\ns_lshl_b32 s{sT1}, s{sWC}, 1\ns_add_u32 s{sT0}, s{sT0}, s{sT1}")
    a(f"s_lshl_b32 s{sT0}, s{sT0}, 10\ns_add_u32 s{sRB}, s{sT0}, {WS_H}")
    a("s_nop 4")
    T = 80; HO = 88
    htok = []
    k = 0
    for nt in range(4):
        sb = vAF + 4 * nt
        for mp in range(2):
            ho = HO + 4 * (k & 1)
            for mm in range(2):
                mt = 2 * mp + mm
                g = vACC + 16 * mt + 4 * nt; u = vACC + 16 * (mt + 4) + 4 * nt
                for q in (0, 2):
                    a(f"v_pk_fma_f32 {V(g+q,2)}, {V(vCS+4*mt+q,2)}, {V(sb,2)}, {V(g+q,2)} op_sel_hi:[1,0,1]")
                for q in (0, 2):
                    a(f"v_pk_mul_f32 {V(T+q,2)}, {V(g+q,2)}, {V(sb,2)} op_sel:[0,1] op_sel_hi:[1,1]")
                for q in (0, 2):
                    a(f"v_pk_fma_f32 {V(u+q,2)}, {V(vCS+16+4*mt+q,2)}, {V(sb,2)}, {V(u+q,2)} op_sel_hi:[1,0,1]")
                for q in range(4): a(f"v_exp_f32 v{T+q}, v{T+q}")
                for q in (0, 2):
                    a(f"v_pk_mul_f32 {V(g+q,2)}, {V(g+q,2)}, {V(u+q,2)}")
                for q in (0, 2):
                    a(f"v_pk_fma_f32 {V(T+q,2)}, {V(T+q,2)}, {V(sb+2,2)}, {V(sb+2,2)} op_sel_hi:[1,0,0]")
                for q in range(4): a(f"v_rcp_f32 v{T+q}, v{T+q}")
                a("s_nop 0")
                for q in (0, 2):
                    a(f"v_pk_mul_f32 {V(g+q,2)}, {V(g+q,2)}, {V(T+q,2)}")
                for q in (0, 2):
                    a(f"v_cvt_pk_bf16_f32 v{ho+2*mm+q//2}, v{g+q}, v{g+q+1}")
                for f in side.get(2 * k + mm, []): f()
            if mp == 0 and nt > 0: a(f"s_add_u32 s{sRB}, s{sRB}, {56*1024}")
            htok.append(a.vm(f"buffer_store_dwordx4 {V(ho)}, v{vLIN}, {S(S_WS)}, s{sRB} offen offset:{1024*mp} sc1"))
            k += 1
    return htok

def conv(a, cfg, hooks, after):
    vA0 = 32; vY = 160; vAD = 192
    a(f"v_and_b32 v24, 15, v{vL}\nv_lshrrev_b32 v25, 4, v{vL}")
    a(f"v_and_b32 v26, 7, v24\nv_lshrrev_b32 v27, 1, v26\nv_and_b32 v26, 1, v26\nv_lshl_add_u32 v26, v27, 2, v26\nv_min_u32 v26, 12, v26")
    a(f"v_add_u32 v27, 1, v24\nv_lshrrev_b32 v28, 3, v27\nv_and_b32 v27, 7, v27\nv_add3_u32 v26, v26, v28, v25\nv_lshlrev_b32 v26, 4, v26")
    a(f"v_mul_u32_u24 v27, {CP_STRIDE}, v27\ns_mul_i32 s{sT3}, s{sWR}, {CH_STRIDE}\ns_lshl_b32 s{sT0}, s{sWC}, 8\ns_add_u32 s{sT3}, s{sT3}, s{sT0}")
    a(f"v_add3_u32 v{vCA}, v26, v27, s{sT3}")
    a(f"v_lshlrev_b32 v26, 5, v24\nv_lshlrev_b32 v27, 4, v25\nv_sub_u32 v26, v27, v26\ns_add_u32 s{sT3}, s{sT3}, {KV_OFF+480}\nv_add_u32 v{vCB}, s{sT3}, v26")
    def rd(rho):
        b = vA0 + 64 * (rho & 1); fs = []
        toks = {}
        def fA(x): toks[('A', x)] = a.ds(f"ds_read_b128 {V(b + 4*x)}, v{vCA} offset:{64*(8*x+rho)}")
        def fB(x): toks[('B', x)] = a.ds(f"ds_read_b128 {V(b + 32 + 4*x)}, v{vCB} offset:{64*(56 - 8*x + rho)}")
        fs.append(lambda: fB(0))
        for x in range(8): fs.append(lambda x=x: fA(x))
        for x in range(1, 8): fs.append(lambda x=x: fB(x))
        return fs, toks
    fs0, t0 = rd(0)
    for f in fs0: f()
    a(f"v_lshlrev_b32 v26, 3, v25\nv_add_u32 v26, v26, v24\nv_sub_u32 v26, 15, v26")
    a(f"s_lshl_b32 s{sT0}, s{sWR}, 4\ns_lshr_b32 s{sT0}, s{sD}, s{sT0}\ns_and_b32 s{sT0}, s{sT0}, 0xffff")
    a(f"v_and_b32 v27, 1, v26\nv_lshlrev_b32 v27, 4, v27\nv_lshlrev_b32 v27, v27, s{sT0}\nv_ashrrev_i32 v26, 1, v26".replace(f"v_lshlrev_b32 v27, v27, s{sT0}", f"v_mov_b32 v28, s{sT0}\nv_lshlrev_b32 v27, v27, v28"))
    for i in range(4):
        a(f"v_cmp_eq_u32 vcc, {i}, v26\ns_nop 1\nv_cndmask_b32 v{vAD+i}, 0, v27, vcc")
    main = []; fill = {}; tk = {0: t0}
    for rho in range(4):
        b = vA0 + 64 * (rho & 1)
        g0 = len(main)
        for bh in range(8):
            for x in range(8 - bh):
                acc = V(vY + 4 * (x + bh))
                first = (rho == 0 and bh == 0)
                main.append(f"v_mfma_f32_16x16x32_bf16 {acc}, {V(b + 4*x)}, {V(b + 32 + 4*bh)}, {'0' if first else acc}")
        if rho < 3:
            fs, tk[rho + 1] = rd(rho + 1)
            for i, f in enumerate(fs): addf(fill, g0 + 2 + i, f)
            addf(fill, g0 + 35, lambda: a("s_waitcnt lgkmcnt(0)"))
        if rho == 0:
            def dterm():
                Lk = a.label("DT")
                a(f"s_cmp_lg_u32 s{sWC}, 0\ns_cbranch_scc1 {Lk}")
                for j in range(8):
                    a(f"v_mfma_f32_16x16x32_bf16 {V(vY+4*j)}, {V(vAD)}, {V(vA0 + 32 + 4*j)}, {V(vY+4*j)}")
                a(f"{Lk}:")
            fill[g0 + 35].insert(0, dterm)
    for gp, fs in hooks.items(): addf(fill, gp, *fs)
    a("s_waitcnt lgkmcnt(0)")
    run_stream(a, main, fill)
    a.stamp(6)
    after()
    a(f"v_add_u32 v24, s{sSTG}, v{vLIN}\ns_xor_b32 s{sT0}, s{sW}, 1\ns_mul_i32 s{sT0}, s{sT0}, 12288\ns_add_u32 s{sT0}, s{sT0}, {L_STG}\nv_add_u32 v25, s{sT0}, v{vLIN}")
    L1 = a.label("CX"); L2 = a.label("CX"); L3 = a.label("CX"); L4 = a.label("CX")
    a(f"s_nop 2\ns_cmp_lg_u32 s{sWC}, 0\ns_cbranch_scc1 {L1}")
    for i in range(4): a(f"ds_write_b128 v24, {V(vY + 16 + 4*i)} offset:{1024*i}")
    a(f"s_branch {L2}\n{L1}:")
    for i in range(4): a(f"ds_write_b128 v24, {V(vY + 4*i)} offset:{1024*i}")
    for i in range(16): a(f"v_mov_b32 v{vY+i}, v{vY+16+i}")
    a(f"{L2}:")
    a(f"v_and_b32 v26, 15, v{vL}\nv_lshlrev_b32 v26, 5, v26\nv_bfe_u32 v27, v{vL}, 4, 1\nv_lshl_or_b32 v26, v27, 9, v26\nv_lshrrev_b32 v27, 5, v{vL}\nv_lshl_or_b32 v26, v27, 4, v26")
    a(f"s_lshl_b32 s{sT0}, s{sCH}, 12\ns_lshl_b32 s{sT1}, s{sWC}, 11\ns_add_u32 s{sT0}, s{sT0}, s{sT1}\ns_add_u32 s{sT0}, s{sT0}, {WS_YT}")
    a("s_waitcnt lgkmcnt(0)\ns_barrier")
    for i in range(4): a(f"ds_read_b128 {V(vY + 16 + 4*i)}, v25 offset:{1024*i}")
    ytok = None
    for pr in range(2):
        a(f"s_waitcnt lgkmcnt({2 - 2*pr})")
        for i in (2 * pr, 2 * pr + 1):
            for q in (0, 2):
                a(f"v_pk_add_f32 {V(vY+4*i+q,2)}, {V(vY+4*i+q,2)}, {V(vY+16+4*i+q,2)}")
        o = vAD + 4 + 4 * pr
        for i in (0, 1):
            for q in (0, 2):
                a(f"v_cvt_pk_bf16_f32 v{o+2*i+q//2}, v{vY+4*(2*pr+i)+q}, v{vY+4*(2*pr+i)+q+1}")
        a(f"s_nop 1\nv_permlane16_swap_b32 v{o}, v{o+2}\nv_permlane16_swap_b32 v{o+1}, v{o+3}")
        ytok = a.vm(f"buffer_store_dwordx4 {V(o)}, v26, {S(S_WS)}, s{sT0} offen offset:{1024*pr} sc1")
    return ytok

vH = 32
def h_dest(nt, kap):
    return V(vH + 4 * ((14 * nt + kap) % 28))
def h_setup(a):
    a(f"s_lshl_b32 s{sT0}, s{sTB}, 2\ns_mul_i32 s{sT0}, s{sT0}, 56\ns_mul_i32 s{sT1}, s{sW}, 14\ns_add_u32 s{sT0}, s{sT0}, s{sT1}\ns_lshl_b32 s{sT0}, s{sT0}, 10\ns_add_u32 s{sWOFF}, s{sT0}, {WS_H}")
def h_load(a, ht, nt, kap):
    def f():
        if kap % 4 == 0: a(f"s_add_u32 s{sXOFF}, s{sWOFF}, {nt*56*1024 + kap*1024}")
        ht[(nt, kap)] = a.vm(f"buffer_load_dwordx4 {h_dest(nt, kap)}, v{vLIN}, {S(S_WS)}, s{sXOFF} offen offset:{1024*(kap % 4)} sc1")
    return f
def fh_issue(a, st):
    a(f"v_min_u32 v29, 27, v{vL}\nv_lshlrev_b32 v29, 2, v29\ns_lshl_b32 s{sT0}, s{sTB}, 7\ns_add_u32 s{sKI}, s{sT0}, {WS_FH}")
    st['fh_txt'] = f"buffer_load_dword v28, v29, {S(S_WS)}, s{sKI} offen sc1"
    st['fh'] = a.vm(st['fh_txt'])

def gemm2(a, cfg, ytok, ht):
    vO = 200
    vSX = 232
    vXP = 248
    PART = [144, 160, 176, 144]
    LA = cfg['LA']; LA0 = cfg['LA0']
    for i in range(LA0, LA): h_load(a, ht, i // 14, i % 14)()
    a(f"v_lshrrev_b32 v24, 4, v{vL}\nv_and_b32 v25, 15, v{vL}\nv_lshlrev_b32 v27, 10, v24\nv_lshl_or_b32 v27, v25, 3, v27")
    a(f"s_lshl_b32 s{sT0}, s{sTB}, 16\ns_lshl_b32 s{sT1}, s{sW}, 12\ns_add_u32 s{sT0}, s{sT0}, s{sT1}\ns_lshl_b32 s{sT1}, s{sDB}, 7\ns_add_u32 s{sRB}, s{sT0}, s{sT1}")
    a.srd(S_X, P_Q, 2048 * 1024)
    for nt in range(4):
        a(f"s_add_u32 s{sT0}, s{sRB}, {nt*16384}")
        a.vm(f"buffer_load_dwordx2 {V(vXP + 2*nt, 2)}, v27, {S(S_X)}, s{sT0} offen")
    a(f"v_lshlrev_b32 v28, 4, v24\ns_lshl_b32 s{sT0}, s{sTB}, 10\ns_lshl_b32 s{sT1}, s{sW}, 6\ns_add_u32 s{sT0}, s{sT0}, s{sT1}\ns_add_u32 s{sT0}, s{sT0}, {WS_STATS}")
    for nt in range(4):
        xs = a.vm(f"buffer_load_dwordx4 {V(vSX + 4*nt)}, v28, {S(S_WS)}, s{sT0} offen offset:{256*nt} sc1")
    a(f"v_and_b32 v28, 7, v25\nv_lshlrev_b32 v29, 8, v25\nv_add_u32 v29, s{sLW}, v29")
    for mt in range(4):
        a(f"v_add_u32 v30, {4*mt}, v24\nv_xor_b32 v30, v30, v28\nv_lshl_add_u32 v{2+mt}, v30, 4, v29")
    a(f"s_lshl_b32 s{sT0}, s{sW}, 2\nv_add_u32 v28, s{sT0}, v24\nv_and_b32 v29, 7, v28\nv_xor_b32 v29, v29, v25\nv_lshlrev_b32 v28, 8, v28\nv_lshl_or_b32 v6, v29, 4, v28")
    main = []; fill = {}
    for nt in range(4):
        for kap in range(14):
            for mt in range(4):
                acc = V(vO + 16 * (nt & 1) + 4 * mt)
                main.append(f"v_mfma_f32_16x16x32_bf16 {acc}, {A(16*kap + 4*mt)}, {h_dest(nt, kap)}, {'0' if kap == 0 else acc}")
            g = 56 * nt + 4 * kap - 1
            if g >= 0: addf(fill, g, lambda nt=nt, kap=kap: a.wvm(ht[(nt, kap)]))
    for i in range(LA, 56): addf(fill, 4 * (i - LA) + 4, h_load(a, ht, i // 14, i % 14))
    st = {}
    def y_publish():
        a.wvm(ytok)
        a(f"s_lshl_b32 s{sT0}, s{sWC}, 11\ns_lshl_b32 s{sT1}, s{sCH}, 2\ns_add_u32 s{sT0}, s{sT0}, s{sT1}\ns_add_u32 s{sT0}, s{sT0}, {WS_FY}")
        a.flag_store(f"s{sT0}", 28)
    addf(fill, cfg['y_pub'], y_publish)
    def fy_issue():
        a(f"v_lshlrev_b32 v9, 2, v{vL}\ns_lshr_b32 s{sT0}, s{sTB}, 4\ns_lshl_b32 s{sT0}, s{sT0}, 11\ns_lshl_b32 s{sT1}, s{sDB}, 8\ns_add_u32 s{sT0}, s{sT0}, s{sT1}\ns_add_u32 s{sKI}, s{sT0}, {WS_FY}")
        st['txt'] = f"buffer_load_dword v8, v9, {S(S_WS)}, s{sKI} offen sc1"
        st['fy'] = a.vm(st['txt'])
    def fy_check():
        a.check_flags(st['fy'], 8, 1, st['txt'])
        a(f"v_lshrrev_b32 v8, 3, v{vL}\nv_and_b32 v9, 7, v{vL}\nv_lshlrev_b32 v8, 12, v8\nv_lshl_or_b32 v8, v9, 4, v8")
        a(f"s_lshl_b32 s{sT0}, s{sDB}, 18\ns_lshl_b32 s{sT1}, s{sW}, 16\ns_add_u32 s{sT0}, s{sT0}, s{sT1}\ns_lshl_b32 s{sT1}, s{sTB}, 7\ns_add_u32 s{sT0}, s{sT0}, s{sT1}\ns_add_u32 s{sT0}, s{sT0}, {WS_YT}")
        a(f"s_lshl_b32 s{sT1}, s{sW}, 11\ns_add_u32 m0, s{sT1}, {L_YT}\ns_nop 0")
        a.vm(f"buffer_load_dwordx4 v8, {S(S_WS)}, s{sT0} offen sc1 lds")
        a(f"s_add_u32 s{sT0}, s{sT0}, 32768\ns_add_u32 m0, s{sT1}, {L_YT+1024}\ns_nop 0")
        st['yt'] = a.vm(f"buffer_load_dwordx4 v8, {S(S_WS)}, s{sT0} offen sc1 lds")
    addf(fill, cfg['fy_issue'], fy_issue); addf(fill, cfg['fy_check'], fy_check)
    def xwrite(nt):
        def f():
            for mt in range(4):
                a(f"ds_write_b128 v{2+mt}, {V(vO + 16*(nt & 1) + 4*mt)} offset:{(nt & 1)*16384}")
        return f
    def xsync(nt):
        def f():
            if nt == cfg['y_pass']: a.wvm(st['yt'])
            a("s_waitcnt lgkmcnt(0)\ns_barrier")
            for w in range(4):
                a(f"ds_read_b128 {V(PART[nt] + 4*w)}, v6 offset:{(nt & 1)*16384 + 4096*w}")
        return f
    def ytrans():
        Y = 192; X = 12
        a(f"v_lshrrev_b32 v8, 2, v{vL}\nv_and_b32 v9, 3, v{vL}\nv_lshlrev_b32 v8, 7, v8\nv_lshl_or_b32 v8, v9, 5, v8")
        a(f"s_lshl_b32 s{sT0}, s{sW}, 3\ns_add_u32 s{sT0}, s{sT0}, {L_YT}\nv_add_u32 v8, s{sT0}, v8")
        for q in range(4): a(f"ds_read_b64_tr_b16 {V(Y+2*q, 2)}, v8 offset:{2048*q}")
        a(f"s_lshl_b32 s{sT0}, s{sW}, 11\ns_add_u32 s{sT0}, s{sT0}, {L_YS}\nv_lshlrev_b32 v9, 7, v25\nv_add_u32 v9, s{sT0}, v9")
        a("s_waitcnt lgkmcnt(0)")
        for q in range(4):
            a(f"v_add_u32 v10, {4*q}, v24\nv_xor_b32 v10, v10, v25\nv_lshl_add_u32 v10, v10, 3, v9")
            a(f"ds_write_b64 v10, {V(Y+2*q, 2)}")
        a(f"v_lshlrev_b32 v9, 7, v24\nv_add_u32 v9, s{sT0}, v9")
        a("s_waitcnt lgkmcnt(0)")
        for nt in range(4):
            a(f"v_add_u32 v10, {4*nt}, v24\nv_xor_b32 v10, v10, v25\nv_lshl_add_u32 v10, v10, 3, v9")
            a(f"ds_read_b64 {V(Y+2*nt, 2)}, v10 offset:{512*nt}")
        a.wvm(xs)
        a("s_waitcnt lgkmcnt(0)")
        for nt in range(4):
            sb = vSX + 4 * nt
            a(f"v_lshlrev_b32 v{X}, 16, v{vXP+2*nt}\nv_and_b32 v{X+1}, 0xffff0000, v{vXP+2*nt}\nv_lshlrev_b32 v{X+2}, 16, v{vXP+2*nt+1}\nv_and_b32 v{X+3}, 0xffff0000, v{vXP+2*nt+1}")
            for q in (0, 2): a(f"v_pk_add_f32 {V(X+q,2)}, {V(X+q,2)}, {V(sb,2)} op_sel_hi:[1,0]")
            for q in (0, 2): a(f"v_pk_mul_f32 {V(X+q,2)}, {V(X+q,2)}, {V(sb+2,2)} op_sel:[0,1] op_sel_hi:[1,1]")
            a(f"v_lshlrev_b32 v{sb}, 16, v{Y+2*nt}\nv_and_b32 v{sb+1}, 0xffff0000, v{Y+2*nt}\nv_lshlrev_b32 v{sb+2}, 16, v{Y+1+2*nt}\nv_and_b32 v{sb+3}, 0xffff0000, v{Y+1+2*nt}")
            for q in (0, 2): a(f"v_pk_mul_f32 {V(sb+q,2)}, {V(sb+q,2)}, {V(X+q,2)}")
    def final(nt):
        def f():
            p = PART[nt]; sb = vSX + 4 * nt
            a("s_waitcnt lgkmcnt(0)")
            for q in (0, 2):
                a(f"v_pk_add_f32 {V(p+q,2)}, {V(p+q,2)}, {V(p+4+q,2)}\nv_pk_add_f32 {V(p+8+q,2)}, {V(p+8+q,2)}, {V(p+12+q,2)}")
            for q in (0, 2): a(f"v_pk_add_f32 {V(p+q,2)}, {V(p+q,2)}, {V(p+8+q,2)}")
            for q in (0, 2): a(f"v_pk_mul_f32 {V(p+4+q,2)}, {V(p+q,2)}, s[{sC0}:{sC1}]")
            for q in range(4): a(f"v_exp_f32 v{p+4+q}, v{p+4+q}")
            a(f"v_lshlrev_b32 v{p+8}, 16, v{vXP+2*nt}\nv_and_b32 v{p+9}, 0xffff0000, v{vXP+2*nt}\nv_lshlrev_b32 v{p+10}, 16, v{vXP+2*nt+1}\nv_and_b32 v{p+11}, 0xffff0000, v{vXP+2*nt+1}")
            for q in (0, 2): a(f"v_pk_add_f32 {V(p+4+q,2)}, {V(p+4+q,2)}, 1.0 op_sel_hi:[1,0]")
            for q in range(4): a(f"v_rcp_f32 v{p+4+q}, v{p+4+q}")
            for q in (0, 2): a(f"v_pk_mul_f32 {V(p+q,2)}, {V(p+q,2)}, {V(sb+q,2)}")
            for q in (0, 2): a(f"v_pk_fma_f32 {V(p+q,2)}, {V(p+q,2)}, {V(p+4+q,2)}, {V(p+8+q,2)}")
            a(f"v_cvt_pk_bf16_f32 v{p+4}, v{p}, v{p+1}\nv_cvt_pk_bf16_f32 v{p+5}, v{p+2}, v{p+3}")
            a(f"s_add_u32 s{sT0}, s{sRB}, {nt*16384}")
            a.vm(f"buffer_store_dwordx2 {V(p+4, 2)}, v27, {S(S_OUT)}, s{sT0} offen")
        return f
    yp = cfg['y_pass']
    for nt in range(3):
        addf(fill, 56 * (nt + 1) + 8, xwrite(nt))
        addf(fill, 56 * (nt + 1) + 16, xsync(nt))
        if nt == yp: addf(fill, 56 * (nt + 1) + 17, ytrans)
    for nt in range(3):
        addf(fill, 56 * (max(nt, yp) + 1) + 24 + 4 * nt, final(nt))
    a.wvm(ht[(0, 0)])
    a.stamp(8)
    run_stream(a, main, fill)
    a.stamp(9)
    a("s_nop 7")
    xwrite(3)(); xsync(3)(); final(3)()

def helper(a, cfg):
    sHW = sCB
    a(f"s_lshl_b32 s{sHW}, s2, 2\ns_add_u32 s{sHW}, s{sHW}, s{sW}")
    a(f"v_lshrrev_b32 v2, 3, v{vL}\nv_and_b32 v3, 7, v{vL}\nv_lshlrev_b32 v3, 4, v3")
    a(f"v_lshl_or_b32 v4, v2, 10, v3")
    a(f"v_mul_u32_u24 v5, 3584, v2\nv_add_u32 v5, v5, v3")
    a(f"v_lshl_or_b32 v6, v2, 14, v3")
    a("s_waitcnt lgkmcnt(0)")
    a.stamp(12)
    a.srd(S_DBG, P_DBG, 256)
    Ln = a.label("NON")
    a(f"s_cmp_lg_u32 s{sHW}, 0\ns_cbranch_scc1 {Ln}")
    a(f"s_memrealtime s[{sT0}:{sT0+1}]\ns_waitcnt lgkmcnt(0)\ns_or_b32 s{sT0}, s{sT0}, 1\nv_mov_b32 v8, s{sT0}\nv_mov_b32 v9, 0\ns_mov_b64 exec, 1")
    a(f"buffer_store_dword v8, v9, {S(S_DBG)}, 0 offen sc1\ns_mov_b64 exec, -1\n{Ln}:")
    a.srd(S_X, P_Q, 2048 * 1024)
    vS = 32; vC = 96
    a(f"s_lshl_b32 s{sT0}, s{sHW}, 14\ns_add_u32 s{sT1}, s{sT0}, 8192")
    stt = []
    for h in range(2):
        for i in range(8):
            stt.append(a.vm(f"buffer_load_dwordx4 {V(vS + 32*h + 4*i)}, v4, {S(S_X)}, s{sT0 if h == 0 else sT1} offen offset:{128*i}"))
    a.stamp(13)
    a(f"s_lshr_b32 s{sT0}, s{sHW}, 1\ns_min_u32 s{sT0}, s{sT0}, 55\ns_cmp_ge_u32 s{sT0}, 28\ns_cselect_b32 s{S_W1}, s{P_W3}, s{P_W1}\ns_cselect_b32 s{S_W1+1}, s{P_W3+1}, s{P_W1+1}")
    a(f"s_cselect_b32 s{sT1}, 28, 0\ns_mov_b32 s{sRB}, s{sT0}\ns_sub_u32 s{sT0}, s{sT0}, s{sT1}\ns_lshl_b32 s{sT0}, s{sT0}, 7")
    a(f"s_and_b32 s{S_W1+1}, s{S_W1+1}, 0xffff\ns_mov_b32 s{S_W1+2}, {512*3584}\ns_mov_b32 s{S_W1+3}, 0x00020000")
    a(f"s_mul_i32 s{sT1}, s{sWC}, {256*3584}\ns_add_u32 s{sWOFF}, s{sT0}, s{sT1}")
    ct = []
    for i in range(32):
        if i: a(f"s_add_u32 s{sWOFF}, s{sWOFF}, {8*3584}")
        ct.append(a.vm(f"buffer_load_dwordx4 {V(vC + 4*i)}, v5, {S(S_W1)}, s{sWOFF} offen"))
    code_prefetch(a, 240)
    a.srd(S_K, P_K, 2048 * 1024); a.srd(S_V, P_V, 2048 * 1024); a.srd(S_SH, P_SH, 4096)
    a(f"s_and_b32 s{sT0}, s{sHW}, 7\ns_lshl_b32 s{sT0}, s{sT0}, 7\ns_lshr_b32 s{sT1}, s{sHW}, 3\ns_lshl_b32 s{sT1}, s{sT1}, 17\ns_add_u32 s{sT0}, s{sT0}, s{sT1}")
    a(f"v_add_u32 v6, s{sT0}, v6\nv_subrev_u32 v7, 3072, v6\ns_mul_i32 s{sXI}, s{sW}, 36864")
    kt = {}
    for i in range(-3, 16):
        a(f"s_add_u32 m0, s{sXI}, {(i+3)*1024}")
        if i < 0:
            a(f"v_add_u32 v10, {(i+3)*1024}, v7")
            kt[('k', i)] = a.vm(f"buffer_load_dwordx4 v10, {S(S_K)}, 0 offen lds")
        else:
            a(f"s_mov_b32 s{sT0}, {i*1024}")
            kt[('k', i)] = a.vm(f"buffer_load_dwordx4 v6, {S(S_K)}, s{sT0} offen lds")
            a(f"s_add_u32 m0, s{sXI}, {(19+i)*1024}\ns_nop 0")
            kt[('v', i)] = a.vm(f"buffer_load_dwordx4 v6, {S(S_V)}, s{sT0} offen lds")
        if i == 2:
            a.stamp(14)
            common_srds(a)
            a("v_mov_b32 v8, 0x3f803f80")
            for h in range(2):
                b = vS + 32 * h
                a.wvm(stt[8 * h + 7])
                for j in range(4): a(f"v_mov_b32 v{12+j}, 0")
                for j in range(32): a(f"v_dot2c_f32_bf16 v{12 + (j & 3)}, v{b+j}, v8")
                a("s_nop 2\nv_add_f32 v12, v12, v13\nv_add_f32 v14, v14, v15\nv_add_f32 v12, v12, v14")
                def red(r):
                    a(f"s_nop 1\nv_add_f32_dpp v{r}, v{r}, v{r} quad_perm:[1,0,3,2] row_mask:0xf bank_mask:0xf")
                    a(f"s_nop 1\nv_add_f32_dpp v{r}, v{r}, v{r} quad_perm:[2,3,0,1] row_mask:0xf bank_mask:0xf")
                    a(f"s_nop 1\nv_add_f32_dpp v{r}, v{r}, v{r} row_half_mirror row_mask:0xf bank_mask:0xf")
                red(12)
                a("v_mul_f32 v12, 0xbb000000, v12")
                for j in range(4): a(f"v_mov_b32 v{16+j}, 0")
                for j in range(32):
                    t = 24 + 2 * (j & 1)
                    a(f"v_lshlrev_b32 v{t}, 16, v{b+j}\nv_and_b32 v{t+1}, 0xffff0000, v{b+j}")
                    a(f"v_pk_add_f32 {V(t,2)}, {V(t,2)}, {V(12,2)} op_sel_hi:[1,0]")
                    a(f"v_pk_fma_f32 {V(16+2*(j&1),2)}, {V(t,2)}, {V(t,2)}, {V(16+2*(j&1),2)}")
                a("v_add_f32 v16, v16, v17\nv_add_f32 v18, v18, v19\nv_add_f32 v16, v16, v18")
                red(16)
                a("v_mul_f32 v16, 0x3b000000, v16")
                a("v_cvt_pk_bf16_f32 v16, v16, v12\nv_and_b32 v12, 0xffff0000, v16\nv_lshlrev_b32 v16, 16, v16")
                a("v_add_f32 v16, 0x3727c5ac, v16\nv_cvt_pk_bf16_f32 v16, v16, v16\nv_lshlrev_b32 v16, 16, v16")
                a("v_sqrt_f32 v16, v16\ns_nop 0\nv_cvt_pk_bf16_f32 v16, v16, v16\nv_lshlrev_b32 v16, 16, v16")
                a("v_rcp_f32 v15, v16\nv_mul_f32 v14, v16, v16\nv_mul_f32 v13, 0xbfb8aa3b, v15")
                a(f"v_lshlrev_b32 v9, 4, v2\ns_lshl_b32 s{sT0}, s{sHW}, 8\ns_add_u32 s{sT0}, s{sT0}, {WS_STATS + 128*h}")
                a(f"s_mov_b32 exec_lo, 0x01010101\ns_mov_b32 exec_hi, 0x01010101")
                a.vm(f"buffer_store_dwordx4 v[12:15], v9, {S(S_WS)}, s{sT0} offen sc1")
                a("s_mov_b64 exec, -1\ns_nop 1")
            a.stamp(15)
            ntk = a.get_nonce_issue(10)
    a.stamp(1)
    wl = []
    for j in range(4):
        if j == 0: a(f"s_and_b32 s{sT0}, s{sHW}, 7\ns_lshl_b32 s{sT0}, s{sT0}, 9\nv_lshlrev_b32 v9, 2, v3")
        wl.append(a.vm(f"buffer_load_dwordx4 {V(vS + 4*j)}, v9, {S(S_SH)}, s{sT0} offen offset:{16*j}"))
    for j in range(8): a(f"v_mov_b32 v{12+j}, 0")
    LCS = 147456
    a(f"v_lshlrev_b32 v30, 3, v{vL}")
    a(f"v_add_u32 v30, {LCS}, v30\nds_write_b64 v30, v[12:13]")
    for i in range(32):
        a.wvm(ct[i])
        for j in range(4):
            t = 24 + 2 * (j & 1)
            a(f"v_lshlrev_b32 v{t}, 16, v{vC+4*i+j}\nv_and_b32 v{t+1}, 0xffff0000, v{vC+4*i+j}")
            a(f"v_pk_add_f32 {V(12+2*j,2)}, {V(12+2*j,2)}, {V(t,2)}")
    a(f"s_lshl_b32 s{sT0}, s{sWR}, 8\ns_add_u32 s{sT0}, s{sT0}, {LCS}\nv_lshlrev_b32 v30, 1, v3\nv_add_u32 v30, s{sT0}, v30")
    a("s_waitcnt lgkmcnt(0)\ns_barrier")
    for j in range(8): a(f"ds_add_f32 v30, v{12+j} offset:{4*j}")
    a("s_waitcnt lgkmcnt(0)\ns_barrier")
    a(f"v_lshlrev_b32 v30, 2, v{vL}\nv_add_u32 v29, s{sT0}, v30\nds_read_b32 v12, v29")
    a(f"s_lshl_b32 s{sT0}, s{sRB}, 8\ns_add_u32 s{sT0}, s{sT0}, {WS_CS}")
    a.get_nonce_check(ntk, 10)
    Lc = a.label("CS")
    a(f"s_waitcnt lgkmcnt(0)\ns_cmp_ge_u32 s{sHW}, 112\ns_cbranch_scc1 {Lc}\ns_cmp_lg_u32 s{sWC}, 0\ns_cbranch_scc1 {Lc}")
    a(f"buffer_store_dword v12, v30, {S(S_WS)}, s{sT0} offen sc1\n{Lc}:")
    a("s_waitcnt vmcnt(0)")
    a(f"s_lshl_b32 s{sT0}, s{sHW}, 2\ns_add_u32 s{sT0}, s{sT0}, {WS_FA}")
    a.flag_store(f"s{sT0}", 12)
    a.stamp(2)
    vWt = 64
    for c in range(8):
        for j in range(4):
            src = vS + 2 * c + (j >> 1); dst = vWt + 8 * j + c
            a(f"v_lshlrev_b32 v{dst}, 16, v{src}" if j % 2 == 0 else f"v_and_b32 v{dst}, 0xffff0000, v{src}")
    a(f"v_add_u32 v30, s{sXI}, v{vLIN}")
    vK = 96
    vR = 128
    vO = 32
    vRes = 160
    rk = {}; rv = {}
    raw = 128
    order = [('k', -3), ('k', -2), ('k', -1)]
    for i in range(16): order += [('k', i), ('v', i)]
    tok = {}
    def issue(n):
        if n < len(order):
            kind, i = order[n]
            off = (i + 3) * 1024 if kind == 'k' else (19 + i) * 1024
            tok[n] = a.ds(f"ds_read_b128 {V(raw + 4*(n % 8))}, v30 offset:{off}")
    for n in range(6): issue(n)
    vT = 224
    for n, (kind, i) in enumerate(order):
        a.wds(tok[n])
        r = raw + 4 * (n % 8)
        if kind == 'k':
            d = vK + 8 * (i & 3)
            for j in range(4): a(f"v_lshlrev_b32 v{d+2*j}, 16, v{r+j}\nv_and_b32 v{d+2*j+1}, 0xffff0000, v{r+j}")
        else:
            tv = vT + 16; o = vT + 8 * (i & 1)
            for j in range(4): a(f"v_lshlrev_b32 v{tv+2*j}, 16, v{r+j}\nv_and_b32 v{tv+2*j+1}, 0xffff0000, v{r+j}")
            for p in range(4): a(f"v_pk_mul_f32 {V(o+2*p,2)}, {V(vK + 8*((i-3) & 3) + 2*p,2)}, {V(vWt+24+2*p,2)}")
            for tap in (2, 1, 0):
                for p in range(4): a(f"v_pk_fma_f32 {V(o+2*p,2)}, {V(vK + 8*((i-tap) & 3) + 2*p,2)}, {V(vWt+8*tap+2*p,2)}, {V(o+2*p,2)}")
            for p in range(4): a(f"v_pk_mul_f32 {V(o+2*p,2)}, {V(o+2*p,2)}, {V(tv+2*p,2)}")
            if i & 1:
                for c in range(8): a(f"v_cvt_pk_bf16_f32 v{vRes + 8*c + (15-i)//2}, v{vT+8+c}, v{vT+c}")
        issue(n + 6)
    a(f"v_and_b32 v9, 7, v{vL}\nv_sub_u32 v10, 7, v2\nv_lshlrev_b32 v10, 1, v10\nv_xor_b32 v10, v10, v9\nv_lshlrev_b32 v9, 11, v9\nv_add_u32 v9, s{sXI}, v9")
    a(f"v_lshl_add_u32 v11, v10, 4, v9\nv_xor_b32 v10, 1, v10\nv_lshl_add_u32 v10, v10, 4, v9")
    for c in range(8):
        a(f"ds_write_b128 v11, {V(vRes+8*c)} offset:{256*c}\nds_write_b128 v10, {V(vRes+8*c+4)} offset:{256*c}")
    a(f"v_lshrrev_b32 v9, 4, v{vL}\nv_and_b32 v10, 15, v{vL}\nv_lshlrev_b32 v11, 8, v9\nv_add_u32 v11, s{sXI}, v11")
    a(f"v_lshlrev_b32 v12, 12, v9\nv_lshl_or_b32 v12, v10, 4, v12")
    a(f"s_and_b32 s{sT0}, s{sHW}, 7\ns_lshl_b32 s{sT0}, s{sT0}, 18\ns_lshr_b32 s{sT1}, s{sHW}, 3\ns_sub_u32 s{sT1}, 15, s{sT1}\ns_lshl_b32 s{sT1}, s{sT1}, 8\ns_add_u32 s{sT0}, s{sT0}, s{sT1}\ns_add_u32 s{sT0}, s{sT0}, {WS_KVR}")
    a("s_waitcnt lgkmcnt(0)")
    rt = []
    for i in range(16):
        a(f"v_xor_b32 v13, {i >> 1}, v10\nv_lshl_add_u32 v13, v13, 4, v11")
        rt.append(a.ds(f"ds_read_b128 {V(32 + 4*i)}, v13 offset:{1024*i}"))
    for i in range(16):
        a.wds(rt[i])
        if i: a(f"s_add_u32 s{sT0}, s{sT0}, 16384")
        a.vm(f"buffer_store_dwordx4 {V(32 + 4*i)}, v12, {S(S_WS)}, s{sT0} offen sc1")
    stash_setup(a)
    a("s_waitcnt vmcnt(0)")
    a(f"s_lshl_b32 s{sT0}, s{sHW}, 2\ns_add_u32 s{sT0}, s{sT0}, {WS_FB}")
    a.flag_store(f"s{sT0}", 12)
    a("s_barrier")
    a.stamp(3)


def build(stamps=False, cfg=None):
    cfg = cfg or {}
    cfg.setdefault('stash_g1', {})
    cfg.setdefault('y_pub', 30); cfg.setdefault('fy_issue', 70); cfg.setdefault('fy_check', 130); cfg.setdefault('y_pass', 2)
    cfg.setdefault('LA', 20); cfg.setdefault('LA0', 14)
    a = G(stamps)
    if stamps:
        a("v_mov_b32 v31, 0")
        a.stamp(0)
    prologue_common(a)
    a("s_cmp_lt_u32 s2, 32\ns_cbranch_scc1 L_HELPER")
    st, sd, sr = gemm1(a, cfg)
    P, cst = conv_stage_parts(a, 48)
    def rounds(kaps):
        fs = []; tk = {}
        for k in kaps:
            f, t = stash_dma(a, k); fs += f; tk[k] = t
        return fs, tk
    def reads(kaps, tk):
        out = []; fs = []
        for k in kaps: fs += stash_reads(a, k, tk[k], out)
        fs.append(lambda: a("s_waitcnt lgkmcnt(0)"))
        return fs
    for f in P['pre'] + P['gload'] + P['even']: f()
    fb = fab_load(a, WS_FB, 24)
    d0, t0 = rounds([0, 1, 2])
    for f in d0: f()
    side = {}
    side[1] = P['zeros']
    side[3] = P['odd'][:4]; side[4] = P['odd'][4:] + P['fix']
    side[5] = [lambda: a.check_flags(fb[0], 24, 2, fb[1])] + P['kv']
    d1, t1 = rounds([3, 4, 5])
    side[6] = reads([0, 1, 2], t0) + d1
    d2, t2 = rounds([6, 7, 8])
    side[13] = reads([3, 4, 5], t1) + d2
    htok = gemm1_epilogue(a, cfg, st, side)
    a.stamp(4)
    a.wvm(cst['k'][-1])
    save = (a.nvm, a.nds)
    a("L_CONV:")
    a("s_waitcnt lgkmcnt(0)\ns_barrier")
    a.stamp(5)
    hooks = {}
    d3, t3 = rounds([9, 10, 11]); d4, t4 = rounds([12, 13])
    for i, f in enumerate(reads([6, 7, 8], t2) + d3): addf(hooks, 18 + i // 2, f)
    for i, f in enumerate(reads([9, 10, 11], t3) + d4): addf(hooks, 36 + 36 + 18 + i // 2, f)
    def h_publish():
        Lk = a.label("HP")
        a.wvm(htok[-1])
        a(f"s_cmp_eq_u32 s{sFH}, 0\ns_cbranch_scc1 {Lk}")
        a.flag_store(f"s{sFH}", 28)
        a.nvm -= 1
        a(f"{Lk}:")
    addf(hooks, cfg.get('h_pub', 50), h_publish)
    g2 = {}
    addf(hooks, cfg.get('fh_issue', 125), lambda: fh_issue(a, g2))
    ht = {}
    def after():
        for f in reads([12, 13], t4): f()
        a.check_flags(g2['fh'], 28, 1, g2['fh_txt'])
        a.stamp(7)
        h_setup(a)
        for i in range(cfg['LA0']): h_load(a, ht, i // 14, i % 14)()
    ytok = conv(a, cfg, hooks, after)
    gemm2(a, cfg, ytok, ht)
    if stamps:
        a.stamp(10)
        a("s_waitcnt vmcnt(0)")
        a.stamp(11)
        a(f"s_lshl_b32 s{sT0}, s2, 2\ns_add_u32 s{sT0}, s{sT0}, s{sW}\ns_lshl_b32 s{sT0}, s{sT0}, 8\ns_add_u32 s{sT0}, s{sT0}, {WS_STAMP}\nv_lshlrev_b32 v2, 2, v{vL}")
        a(f"buffer_store_dword v31, v2, {S(S_WS)}, s{sT0} offen")
        if cfg.get('dbg_wg') is not None:
            a(f"s_cmp_lg_u32 s2, {cfg['dbg_wg']}\ns_cbranch_scc1 L_END\ns_cmp_lg_u32 s{sW}, 0\ns_cbranch_scc1 L_END")
            a(f"v_readlane_b32 s{sT0}, v31, 32\ns_nop 1\nv_subrev_u32 v3, s{sT0}, v31\nv_subrev_u32 v2, 128, v2")
            a("s_mov_b32 exec_lo, 0\ns_mov_b32 exec_hi, 0xfffe")
            a(f"buffer_store_dword v3, v2, {S(S_DBG)}, 0 offen")
    if cfg.get('pad_us'):
        a(f"v_readlane_b32 s{sT1}, v31, 32\nL_PAD:\ns_memrealtime s[16:17]\ns_waitcnt lgkmcnt(0)\ns_sub_u32 s16, s16, s{sT1}\ns_cmp_lt_u32 s16, {cfg['pad_us']*100}\ns_cbranch_scc1 L_PAD")
    a("L_END:\ns_endpgm")
    n_main = len(a.l)
    a("L_HELPER:")
    helper(a, cfg)
    a(f"s_mov_b32 s{sFH}, 0")
    P, cst = conv_stage_parts(a, 48)
    for f in P['pre'] + P['gload'] + P['even']: f()
    fa = fab_load(a, WS_FA, 24)
    d0, t0 = rounds([0, 1, 2])
    for f in d0: f()
    for f in P['zeros'] + P['odd'] + P['fix']: f()
    a.check_flags(fa[0], 24, 2, fa[1])
    fb = fab_load(a, WS_FB, 24)
    d1, t1 = rounds([3, 4, 5])
    for f in reads([0, 1, 2], t0) + d1: f()
    a.check_flags(fb[0], 24, 2, fb[1])
    for f in P['kv']: f()
    d2, t2 = rounds([6, 7, 8])
    for f in reads([3, 4, 5], t1) + d2: f()
    a("s_waitcnt vmcnt(0)")
    a.stamp(4)
    a("s_branch L_CONV")
    for b in a.slow: a(b)
    a("L_CODE_END:\ns_endpgm")
    hazard.check(a.l[:n_main]); hazard.check(a.l[n_main:])
    hdr = open("cdna_kernels/" + NAME + ".s.ref").read().split("; Override launch")[0] if __name__ == "__main__" else ""
    return module([dict(name=NAME + "_kernel", body=a.text(), grid=256, block=256, lds=163840, vgpr=512, sgpr=102, accum=256)], header="")

if __name__ == "__main__":
    out = sys.argv[1]
    stamps = "--stamps" in sys.argv
    cfg = {}
    for x in sys.argv[2:]:
        if "=" in x:
            k, v = x.split("="); cfg[k] = eval(v)
    open(out, "w").write(build(stamps, cfg))
```
